```python
import torch

def _softmax(x, axis=-1):
    return torch.softmax(x, dim=axis)

def _gelu(x):
    return torch.nn.functional.gelu(x, approximate='tanh')

def _silu(x):
    return torch.nn.functional.silu(x)

def _sigmoid(x):
    return torch.sigmoid(x)

def _layernorm(x, axis=-1, eps=1e-05):
    m = x.mean(dim=axis, keepdim=True)
    v = x.var(dim=axis, keepdim=True, unbiased=False)
    return (x - m) / torch.sqrt(v + eps)

def _scatter_add(tgt, idx, src, axis=0):
    return tgt.clone().index_add_(axis, idx, src)

def _segment_sum(src, seg, n):
    out = torch.zeros((n,) + src.shape[1:], dtype=src.dtype)
    return out.index_add_(0, seg, src)

def _pad(x, pw):
    flat = tuple((v for pair in reversed(pw) for v in pair))
    return torch.nn.functional.pad(x, flat)
kernel_name = 'gated_mix__ssm_conv_s5__mixer_gmlp__prompt'

def setup_inputs():

    _w = lambda a: (lambda t: t.to(torch.bfloat16) if t.is_floating_point() else t)(torch.as_tensor(a))

    def _A_setup():
        B, S, D = (1, 2048, 512)
        P = D
        Lambda_re = -0.5 * (lambda _x: torch.exp(torch.as_tensor(_x)))((lambda *s: torch.randn(*s, dtype=torch.bfloat16) * 0.8)(P))
        Lambda_im = (lambda *s: torch.randn(*s, dtype=torch.bfloat16) * 0.8)(P) * 1.0
        B_re = (lambda *s: torch.randn(*s, dtype=torch.bfloat16) * 0.8)(P, D) * D ** (-0.5)
        B_im = (lambda *s: torch.randn(*s, dtype=torch.bfloat16) * 0.8)(P, D) * D ** (-0.5)
        C_re = (lambda *s: torch.randn(*s, dtype=torch.bfloat16) * 0.8)(D, P) * P ** (-0.5)
        C_im = (lambda *s: torch.randn(*s, dtype=torch.bfloat16) * 0.8)(D, P) * P ** (-0.5)
        log_dt = (lambda *s: torch.randn(*s, dtype=torch.bfloat16) * 0.8)(P) * 0.3 - 2.0
        Dskip = (lambda *s: torch.randn(*s, dtype=torch.bfloat16) * 0.8)(D)
        return {'x': _w((lambda *s: torch.randn(*s, dtype=torch.bfloat16) * 0.05)(B, S, D)), 'Lambda_re': _w(Lambda_re), 'Lambda_im': _w(Lambda_im), 'B_re': _w(B_re), 'B_im': _w(B_im), 'C_re': _w(C_re), 'C_im': _w(C_im), 'log_dt': _w(log_dt), 'Dskip': _w(Dskip)}
    _A_in = _A_setup()

    def _B_setup():
        B, S, D, F = (1, 2048, 512, 1376)
        Fh = F // 2
        return {'x': _w((lambda *s: torch.randn(*s, dtype=torch.bfloat16) * 0.05)(B, S, D)), 'w_in': _w((lambda *s: torch.randn(*s, dtype=torch.bfloat16) * 0.2)(D, 2 * Fh)), 'w_sp': _w(0.01 * (lambda *s: torch.randn(*s, dtype=torch.bfloat16) * 0.2)(S, S)), 'b_sp': _w(1.0 + 0.01 * (lambda *s: torch.randn(*s, dtype=torch.bfloat16) * 0.05)(S)), 'w_out': _w((lambda *s: torch.randn(*s, dtype=torch.bfloat16) * 0.05)(Fh, D))}
    _B_in = _B_setup()
    return {'A_x': _A_in['x'], 'A_Lambda_re': _A_in['Lambda_re'], 'A_Lambda_im': _A_in['Lambda_im'], 'A_B_re': _A_in['B_re'], 'A_B_im': _A_in['B_im'], 'A_C_re': _A_in['C_re'], 'A_C_im': _A_in['C_im'], 'A_log_dt': _A_in['log_dt'], 'A_Dskip': _A_in['Dskip'], 'B_x': _B_in['x'], 'B_w_in': _B_in['w_in'], 'B_w_sp': _B_in['w_sp'], 'B_b_sp': _B_in['b_sp'], 'B_w_out': _B_in['w_out'], 'gate_w': _w((lambda *s: torch.randn(*s, dtype=torch.bfloat16) * 0.05)(512) * 16.0)}

def reference(A_x, A_Lambda_re, A_Lambda_im, A_B_re, A_B_im, A_C_re, A_C_im, A_log_dt, A_Dskip, B_x, B_w_in, B_w_sp, B_b_sp, B_w_out, gate_w):

    def _A_ref(x, Lambda_re, Lambda_im, B_re, B_im, C_re, C_im, log_dt, Dskip):
        Bsz, L, H = x.shape
        Lam = Lambda_re + 1j * Lambda_im
        Bmat = B_re + 1j * B_im
        Cmat = C_re + 1j * C_im
        dt = torch.exp(log_dt)
        Lam_bar = torch.exp(dt * Lam)
        B_bar = ((Lam_bar - 1.0) / Lam)[:, None] * Bmat
        Bu = torch.einsum('bld,pd->blp', x + 0j, B_bar)
        h = torch.zeros_like(Bu[:, 0, :])
        hs = []
        for t in range(L):
            h = Lam_bar[None, :] * h + Bu[:, t, :]
            hs.append(h)
        hseq = torch.stack(hs, 1)
        y = 2.0 * torch.einsum('blp,dp->bld', hseq, Cmat).real + x * Dskip[None, None, :]
        return y

    def _B_ref(x, w_in, w_sp, b_sp, w_out):
        B, S, D = x.shape
        F = w_in.shape[-1]
        Fh = F // 2
        z = _gelu(torch.einsum('bsd,df->bsf', x, w_in))
        z1 = z[..., :Fh].clone()
        z2 = _layernorm(z[..., Fh:], axis=-1)
        g = torch.einsum('ts,bsf->btf', w_sp, z2) + b_sp[None, :, None]
        return torch.einsum('bsf,fd->bsd', z1 * g, w_out)
    x = A_x
    g = _sigmoid((x * gate_w).sum(-1, keepdims=True))
    a = _A_ref(x, A_Lambda_re, A_Lambda_im, A_B_re, A_B_im, A_C_re, A_C_im, A_log_dt, A_Dskip)
    b = _B_ref(x, B_w_in, B_w_sp, B_b_sp, B_w_out)
    return g * a + (1 - g) * b
```

```python
import re


def v(i, n=1):
    return f"v{i}" if n == 1 else f"v[{i}:{i+n-1}]"


def s(i, n=1):
    return f"s{i}" if n == 1 else f"s[{i}:{i+n-1}]"


class Alloc:
    def __init__(self, start, limit, kind):
        self.next = start
        self.limit = limit
        self.kind = kind
        self.hi = start

    def __call__(self, n=1, align=None):
        if align is None:
            align = 1 if n == 1 else (2 if self.kind == 'v' else (4 if n >= 4 else 2))
        b = (self.next + align - 1) // align * align
        self.next = b + n
        assert self.next <= self.limit, f"out of {self.kind} regs"
        self.hi = max(self.hi, self.next)
        return b

    def mark(self):
        return self.next

    def release(self, m):
        self.next = m


class Asm:
    def __init__(self):
        self.lines = []
        self.uid = 0

    def __call__(self, text):
        for ln in text.split("\n"):
            ln = ln.strip()
            if ln:
                self.lines.append(ln)

    def label(self, name):
        self.lines.append(name + ":")

    def newlabel(self, base="L"):
        self.uid += 1
        return f"{base}_{self.uid}"

    def comment(self, t):
        self.lines.append("; " + t)

    def text(self):
        out = []
        for ln in self.lines:
            if ln.endswith(":") or ln.startswith("."):
                out.append(ln)
            else:
                out.append("  " + ln)
        return "\n".join(out) + "\n"


REG_RE = re.compile(r"^(-|abs\()?([vsa])(\d+)\)?$")
RNG_RE = re.compile(r"^(-|abs\()?([vsa])\[(\d+):(\d+)\]\)?$")
TRANS = ("v_exp_f32", "v_log_f32", "v_rcp_f32", "v_rsq_f32", "v_sqrt_f32", "v_sin_f32", "v_cos_f32", "v_rcp_iflag_f32")


def regs_of(tok):
    tok = tok.strip()
    m = REG_RE.match(tok)
    if m:
        return [(m.group(2), int(m.group(3)))]
    m = RNG_RE.match(tok)
    if m:
        return [(m.group(2), i) for i in range(int(m.group(3)), int(m.group(4)) + 1)]
    if tok == "vcc":
        return [("s", "vcc")]
    if tok in ("vcc_lo", "vcc_hi"):
        return [("s", "vcc")]
    if tok == "exec":
        return [("s", "exec")]
    if tok == "m0":
        return [("s", "m0")]
    return []


class Ins:
    def __init__(self, text, idx):
        self.text = text
        self.idx = idx
        t = text.split(";")[0].strip()
        parts = t.split(None, 1)
        self.op = parts[0]
        rest = parts[1] if len(parts) > 1 else ""
        ops = []
        depth = 0
        cur = ""
        for ch in rest:
            if ch in "[(":
                depth += 1
            if ch in "])":
                depth -= 1
            if ch == "," and depth == 0:
                ops.append(cur.strip())
                cur = ""
            else:
                cur += ch
        if cur.strip():
            ops.append(cur.strip())
        self.mods = ""
        if ops:
            last = ops[-1].split(None, 1)
            if len(last) > 1 and not ops[-1].startswith("hwreg") and self.op != "s_waitcnt":
                ops[-1] = last[0]
                self.mods = last[1]
        self.ops = ops
        self.classify()

    def classify(self):
        op = self.op
        o = self.ops
        self.kind = "other"
        self.wr = []
        self.rd = []
        self.states = 1
        self.is_dpp = "_dpp" in op or "row_" in self.mods or "quad_perm" in self.mods
        R = lambda k: regs_of(o[k]) if k < len(o) else []
        allr = lambda a: sum((R(k) for k in range(a, len(o))), [])
        if op == "s_nop":
            self.states = int(o[0], 0) + 1
            self.kind = "nop"
        elif op.startswith("v_mfma"):
            self.kind = "mfma"
            self.wr = R(0)
            self.rdA = R(1) + R(2)
            self.rdC = R(3)
            self.rd = self.rdA + self.rdC
            self.passes = 8 if "32x32" in op else 4
        elif op.startswith("v_cmp"):
            self.kind = "valu"
            self.wr = R(0)
            self.rd = allr(1)
        elif op.startswith("v_readfirstlane") or op.startswith("v_readlane"):
            self.kind = "valu"
            self.wr = R(0)
            self.rd = allr(1)
        elif op.startswith("v_permlane"):
            self.kind = "valu"
            self.wr = R(0) + R(1)
            self.rd = R(0) + R(1)
        elif op.startswith("v_add_co") or op.startswith("v_sub_co") or op.startswith("v_addc_co"):
            self.kind = "valu"
            self.wr = R(0) + R(1)
            self.rd = allr(2)
        elif op.startswith("v_"):
            self.kind = "valu"
            self.wr = R(0)
            self.rd = allr(1)
            if op.startswith("v_fmac") or op.startswith("v_dot2c") or self.is_dpp or op.startswith("v_writelane"):
                self.rd = self.rd + R(0)
        elif op.startswith("buffer_load") or op.startswith("global_load"):
            self.kind = "vmem"
            self.lds = (" lds" in " " + self.mods) or "_lds_" in op
            if self.lds:
                self.rd = allr(0) + [("s", "m0")]
                self.wr = []
            else:
                self.wr = R(0)
                self.rd = allr(1)
        elif op.startswith("buffer_store") or op.startswith("global_store") or op.startswith("buffer_atomic") or op.startswith("global_atomic"):
            self.kind = "vmem"
            self.lds = False
            self.rd = allr(0)
            self.store = True
            if op.startswith("buffer"):
                self.data = R(0)
            else:
                self.data = R(1)
            self.wide = "x4" in op or "x3" in op
            if "atomic" in op and "sc0" in self.mods:
                self.wr = R(0)
        elif op.startswith("buffer_inv") or op.startswith("buffer_wbl2"):
            self.kind = "vmem"
            self.lds = False
        elif op.startswith("ds_read") or op.startswith("ds_bpermute") or op.startswith("ds_swizzle") or op.startswith("ds_permute"):
            self.kind = "ds"
            self.wr = R(0)
            self.rd = allr(1)
        elif op.startswith("ds_"):
            self.kind = "ds"
            self.rd = allr(0)
        elif op.startswith("s_load") or op.startswith("s_memtime") or op.startswith("s_memrealtime") or op.startswith("s_buffer_load"):
            self.kind = "smem"
            self.wr = R(0)
            self.rd = allr(1)
        elif op in ("s_waitcnt", "s_barrier", "s_endpgm", "s_sleep", "s_setprio") or op.startswith("s_cbranch") or op == "s_branch":
            self.kind = "ctl"
            if op.startswith("s_cbranch_vcc"):
                self.rd = [("s", "vcc")]
        elif op.startswith("s_cmp") or op.startswith("s_bitcmp"):
            self.kind = "salu"
            self.rd = allr(0)
        elif op.startswith("s_"):
            self.kind = "salu"
            self.wr = R(0)
            self.rd = allr(1)
            if "saveexec" in op:
                self.wr = self.wr + [("s", "exec")]
            if op.startswith("s_addk") or op.startswith("s_mulk"):
                self.rd = self.rd + R(0)
        else:
            raise ValueError("unknown instr: " + self.text)
        self.is_trans = op.replace("_e32", "").replace("_e64", "") in TRANS
        self.is_store = getattr(self, "store", False)


def required_states(p, c):
    need = 0
    pw = set(p.wr)
    vw = {r for r in pw if r[0] in "va"}
    sw = {r for r in pw if r[0] == "s"}
    crd = set(c.rd)
    cwr = set(c.wr)
    if p.kind == "valu":
        if c.kind == "mfma" and vw & crd:
            need = max(need, 2)
        if c.kind == "valu":
            if p.is_trans and not c.is_trans and vw & crd:
                need = max(need, 1)
            if p.is_trans and c.is_trans and vw & crd:
                need = max(need, 1)
            if (c.op.startswith("v_readfirstlane") or c.op.startswith("v_readlane")) and vw & crd:
                need = max(need, 1)
            if c.is_dpp and vw & crd:
                need = max(need, 2)
            if c.op.startswith("v_permlane") and vw & crd:
                need = max(need, 2)
            if sw & crd:
                need = max(need, 4 if c.op.startswith("v_readlane") or c.op.startswith("v_writelane") else 2)
        if c.kind == "vmem" and sw & crd:
            need = max(need, 5)
    if p.kind == "mfma":
        big = 12 if p.passes == 8 else 8
        if c.kind == "mfma":
            if vw & set(c.rdA):
                need = max(need, big)
            if vw & set(c.rdC):
                if not (c.rdC == p.wr and c.passes == p.passes):
                    need = max(need, big - 2)
            elif vw & cwr:
                need = max(need, big)
        elif c.kind in ("valu", "vmem", "ds") and (vw & crd or vw & cwr):
            need = max(need, big)
        if c.kind == "valu" and set(p.rdC) & cwr:
            need = max(need, 7 if p.passes == 8 else 3)
    if p.kind == "salu" and ("s", "m0") in pw and c.kind == "vmem" and getattr(c, "lds", False):
        need = max(need, 1)
    if p.kind == "vmem" and p.is_store and getattr(p, "wide", False):
        if set(p.data) & cwr:
            need = max(need, 2 if c.kind in ("valu", "mfma") else 1)
    return need


def parse(lines):
    ins = []
    labels = {}
    for ln in lines:
        if ln.startswith(";") or ln.startswith("."):
            continue
        if ln.endswith(":"):
            labels[ln[:-1]] = len(ins)
            continue
        ins.append(Ins(ln, len(ins)))
    return ins, labels


def check_hazards(lines, verbose=True):
    ins, labels = parse(lines)
    n = len(ins)
    preds = [[] for _ in range(n + 1)]
    for i, x in enumerate(ins):
        if x.op == "s_endpgm":
            continue
        if x.op == "s_branch":
            preds[labels[x.ops[0]]].append(i)
            continue
        if x.op.startswith("s_cbranch"):
            preds[labels[x.ops[0]]].append(i)
        preds[i + 1].append(i)
    errs = []
    MAXD = 12
    for ci, c in enumerate(ins):
        if c.kind in ("nop",):
            continue
        stack = [(p, 0) for p in preds[ci]]
        seen = {}
        while stack:
            pi, d = stack.pop()
            if pi in seen and seen[pi] <= d:
                continue
            seen[pi] = d
            p = ins[pi]
            need = required_states(p, c)
            if need > d:
                errs.append(f"HAZARD need {need} have {d}: [{pi}] {p.text}  ->  [{ci}] {c.text}")
            nd = d + p.states
            if nd < MAXD:
                for q in preds[pi]:
                    stack.append((q, nd))
    if verbose:
        for e in errs:
            print(e)
    return errs


def check_waits(lines, verbose=True):
    ins, labels = parse(lines)
    errs = set()
    start = 0
    stack = [(start, (), ())]
    seen = set()
    steps = 0
    while stack:
        pc, vm, lg = stack.pop()
        while True:
            if pc >= len(ins):
                break
            key = (pc, vm, lg)
            x = ins[pc]
            if x.kind == "ctl" and (x.op.startswith("s_cbranch") or x.op == "s_branch"):
                if key in seen:
                    break
                seen.add(key)
            steps += 1
            if steps > 3000000:
                print("check_waits: step limit")
                return sorted(errs)
            touched = set(x.rd) | set(x.wr)
            for q, name in ((vm, "vm"), (lg, "lgkm")):
                for ent in q:
                    if touched & set(ent[1]):
                        errs.add(f"WAIT({name}) missing: [{pc}] {x.text} touches pending result of [{ent[0]}] {ins[ent[0]].text}")
            if x.op == "s_waitcnt":
                t = x.text
                m = re.search(r"vmcnt\((\d+)\)", t)
                if m:
                    k = int(m.group(1))
                    vm = vm[len(vm) - k:] if k < len(vm) else vm
                    if k == 0:
                        vm = ()
                m = re.search(r"lgkmcnt\((\d+)\)", t)
                if m:
                    k = int(m.group(1))
                    if k == 0:
                        lg = ()
                    elif not any(e[2] for e in lg) and k < len(lg):
                        lg = lg[len(lg) - k:]
            elif x.kind == "vmem":
                vm = vm + ((pc, tuple(x.wr), False),)
                vm = vm[-70:]
            elif x.kind == "ds":
                lg = lg + ((pc, tuple(x.wr), False),)
                lg = lg[-40:]
            elif x.kind == "smem":
                lg = lg + ((pc, tuple(x.wr), True),)
            if x.op == "s_endpgm":
                break
            if x.op == "s_branch":
                pc = labels[x.ops[0]]
                continue
            if x.op.startswith("s_cbranch"):
                stack.append((labels[x.ops[0]], vm, lg))
            pc += 1
    errs = sorted(errs)
    if verbose:
        for e in errs:
            print(e)
    return errs
```

```python
import math
import struct
import sys
from asmlib import Asm, Alloc, v, s, check_hazards, check_waits

NAME = "gated_mix__ssm_conv_s5__mixer_gmlp__prompt"

Z1_OFF = 0
Z1_STRIDE = 1408
Z2N_OFF = 0x300000
H_OFF = 0x600000
P_OFF = 0xA00000
A_OFF = 0xD00000
G_OFF = 0x1100000
SC_OFF = 0x1110000
LN_OFF = 0x1130000
TS_OFF = 0x1150000
WS_SIZE = 0x1200000

P_X, P_LRE, P_LIM, P_BRE, P_BIM, P_CRE, P_CIM, P_LDT = 16, 18, 20, 22, 24, 26, 28, 30
P_DSK, P_BX, P_WIN, P_WSP, P_BSP, P_WOUT, P_GW, P_OUT = 32, 34, 36, 38, 40, 42, 44, 46
P_DBG, P_WS = 48, 50

LOG2E = 1.4426950408889634


def f2u(x):
    return struct.unpack("<I", struct.pack("<f", x))[0]


def hx(x):
    return hex(x & 0xFFFFFFFF)


def load_kernargs(a):
    a("s_load_dwordx16 s[16:31], s[0:1], 0")
    a("s_load_dwordx16 s[32:47], s[0:1], 64")
    a("s_load_dwordx4 s[48:51], s[0:1], 128")


def make_srd(a, dst, ptr, size):
    a(f"s_mov_b32 s{dst}, s{ptr}")
    a(f"s_and_b32 s{dst+1}, s{ptr+1}, 0xffff")
    a(f"s_mov_b32 s{dst+2}, {hx(size)}")
    a(f"s_mov_b32 s{dst+3}, 0x20000")


class LdsAddr:
    def __init__(self, a, va, base_reg, max_const):
        self.regs = [base_reg]
        nreg = max_const // 65536 + 1
        for r in range(1, nreg):
            x = va()
            a(f"v_add_u32 {v(x)}, {hx(65536*r)}, {v(base_reg)}")
            self.regs.append(x)

    def at(self, const):
        r = const // 65536
        return f"{v(self.regs[r])} offset:{const - r*65536}"


class LgQ:
    def __init__(self, a):
        self.a = a
        self.issued = 0
        self.done = 0

    def issue(self, text):
        self.a(text)
        self.issued += 1
        return self.issued

    def need(self, tok):
        if tok <= self.done:
            return
        n = self.issued - tok
        if n > 15:
            n = 15
        self.a(f"s_waitcnt lgkmcnt({n})")
        self.done = self.issued - n

    def drain(self):
        if self.done < self.issued:
            self.a("s_waitcnt lgkmcnt(0)")
            self.done = self.issued


def gelu(a, regs, t0, sA, sB):
    for i in range(0, len(regs), 4):
        g = regs[i:i + 4]
        n = len(g)
        for k, r in enumerate(g):
            a(f"v_mul_f32 {v(t0+k)}, {v(r)}, {v(r)}")
        for k, r in enumerate(g):
            a(f"v_fma_f32 {v(t0+k)}, {v(t0+k)}, {s(sB)}, {v(t0+7)}")
        for k, r in enumerate(g):
            a(f"v_mul_f32 {v(t0+k)}, {v(t0+k)}, {v(r)}")
        for k, r in enumerate(g):
            a(f"v_exp_f32 {v(t0+k)}, {v(t0+k)}")
        if n < 2:
            a("s_nop 0")
        for k, r in enumerate(g):
            a(f"v_add_f32 {v(t0+k)}, 1.0, {v(t0+k)}")
        for k, r in enumerate(g):
            a(f"v_rcp_f32 {v(t0+k)}, {v(t0+k)}")
        if n < 2:
            a("s_nop 0")
        for k, r in enumerate(g):
            a(f"v_mul_f32 {v(r)}, {v(r)}, {v(t0+k)}")


def cmul(a, dr, di, ar, ai, br, bi):
    a(f"v_mul_f32 {v(dr)}, {v(ar)}, {v(br)}")
    a(f"v_mul_f32 {v(di)}, {v(ar)}, {v(bi)}")
    a(f"v_fma_f32 {v(dr)}, -{v(ai)}, {v(bi)}, {v(dr)}")
    a(f"v_fma_f32 {v(di)}, {v(ai)}, {v(br)}, {v(di)}")


def cfma(a, dr, di, ar, ai, br, bi, cr, ci):
    a(f"v_fma_f32 {v(dr)}, {v(ar)}, {v(br)}, {v(cr)}")
    a(f"v_fma_f32 {v(di)}, {v(ar)}, {v(bi)}, {v(ci)}")
    a(f"v_fma_f32 {v(dr)}, -{v(ai)}, {v(bi)}, {v(dr)}")
    a(f"v_fma_f32 {v(di)}, {v(ai)}, {v(br)}, {v(di)}")


def cpow(a, dr, di, n_f, la, lb, t):
    a(f"v_mul_f32 {v(t)}, {v(n_f)}, {v(la)}")
    a(f"v_mul_f32 {v(di)}, {v(n_f)}, {v(lb)}")
    a(f"v_exp_f32 {v(t)}, {v(t)}")
    a(f"v_fract_f32 {v(di)}, {v(di)}")
    a(f"v_cos_f32 {v(dr)}, {v(di)}")
    a(f"v_sin_f32 {v(di)}, {v(di)}")
    a(f"v_mul_f32 {v(dr)}, {v(dr)}, {v(t)}")
    a(f"v_mul_f32 {v(di)}, {v(di)}, {v(t)}")


def fetch_nonce_issue(a, vN, vZero):
    a(f"global_load_dwordx2 {v(vN,2)}, {v(vZero)}, s[{P_DBG}:{P_DBG+1}] sc1")


def fetch_nonce_finish(a, vN, vZero, sCnt):
    L = a.newlabel("nonce")
    D = a.newlabel("nonce_ok")
    a(f"s_mov_b32 {s(sCnt)}, 0x100000")
    a.label(L)
    a("s_waitcnt vmcnt(0)")
    a(f"v_cmp_ne_u32 vcc, 0, {v(vN+1)}")
    a("s_nop 1")
    a(f"s_cbranch_vccnz {D}")
    a(f"s_sub_u32 {s(sCnt)}, {s(sCnt)}, 1")
    a(f"s_cbranch_scc1 {D}")
    a("s_sleep 2")
    fetch_nonce_issue(a, vN, vZero)
    a(f"s_branch {L}")
    a.label(D)


def gen_k1(a):
    sJ, sI, sRB, sC, sHalf, sW = 3, 4, 5, 6, 7, 8
    sT0, sT1, sT2, sCnt = 9, 10, 11, 12
    SRD_X, SRD_B, SRD_WS = 52, 56, 60
    sM0A, sM0B = 64, 65
    sOffB = [66, 67, 68]
    sKA, sGA, sGB, sMask, sTile = 69, 70, 71, 72, 73
    sSt = 74
    a.label("k1_kernel")
    a("s_cmp_ge_u32 s2, 256")
    a("s_cbranch_scc1 k1_end")
    load_kernargs(a)
    a("s_memrealtime s[14:15]")
    va = Alloc(1, 256, 'v')
    vL = va()
    vT = [va() for _ in range(8)]
    a(f"v_lshrrev_b32 {v(vT[0])}, 6, v0")
    a(f"v_and_b32 {v(vL)}, 63, v0")
    a(f"v_readfirstlane_b32 {s(sW)}, {v(vT[0])}")
    a(f"s_and_b32 {s(sJ)}, s2, 7")
    a(f"s_lshr_b32 {s(sI)}, s2, 3")
    a(f"s_lshr_b32 {s(sRB)}, {s(sJ)}, 1")
    a(f"s_lshl_b32 {s(sRB)}, {s(sRB)}, 2")
    a(f"s_and_b32 {s(sT0)}, {s(sI)}, 3")
    a(f"s_add_u32 {s(sRB)}, {s(sRB)}, {s(sT0)}")
    a(f"s_lshr_b32 {s(sC)}, {s(sI)}, 2")
    a(f"s_and_b32 {s(sHalf)}, {s(sJ)}, 1")
    vChunk, vA0, vA1, vZero, vN = va(), va(), va(), va(), va(2)
    a(f"v_and_b32 {v(vT[0])}, 7, {v(vL)}")
    a(f"v_lshrrev_b32 {v(vT[1])}, 4, {v(vL)}")
    a(f"v_xor_b32 {v(vChunk)}, {v(vT[0])}, {v(vT[1])}")
    a(f"v_lshlrev_b32 {v(vChunk)}, 4, {v(vChunk)}")
    a(f"v_mov_b32 {v(vZero)}, 0")
    vn, vq = va(), va()
    a(f"v_and_b32 {v(vn)}, 15, {v(vL)}")
    a(f"v_lshrrev_b32 {v(vq)}, 4, {v(vL)}")
    a(f"s_lshl_b32 {s(sM0A)}, {s(sW)}, 11")
    vRA = va()
    a(f"v_lshrrev_b32 {v(vT[0])}, 1, {v(vn)}")
    a(f"v_xor_b32 {v(vT[0])}, {v(vT[0])}, {v(vq)}")
    a(f"v_lshlrev_b32 {v(vT[0])}, 4, {v(vT[0])}")
    a(f"v_lshl_add_u32 {v(vRA)}, {v(vn)}, 7, {v(vT[0])}")
    a(f"s_cmp_ge_u32 {s(sC)}, 4")
    a("s_cbranch_scc1 k1_z")
    mark = va.mark()

    def nonce_publish():
        sk = a.newlabel("nopub")
        a(f"s_or_b32 {s(sT0)}, s2, {s(sW)}")
        a(f"s_cmp_lg_u32 {s(sT0)}, 0")
        a(f"s_cbranch_scc1 {sk}")
        a(f"s_or_b32 s15, s15, 0x80000000")
        a(f"v_mov_b32 {v(vN)}, s14")
        a(f"v_mov_b32 {v(vN+1)}, s15")
        a(f"global_store_dwordx2 {v(vZero)}, {v(vN,2)}, s[{P_DBG}:{P_DBG+1}] sc1")
        a.label(sk)

    sPT = sTile
    a(f"s_lshl_b32 {s(sPT)}, {s(sHalf)}, 2")
    a(f"s_add_u32 {s(sPT)}, {s(sPT)}, {s(sC)}")
    vB0, vB1 = va(), va()
    a(f"s_lshl_b32 {s(sT0)}, {s(sRB)}, 7")
    a(f"s_lshr_b32 {s(sT1)}, {s(sW)}, 2")
    a(f"s_lshl_b32 {s(sT1)}, {s(sT1)}, 6")
    a(f"s_add_u32 {s(sT0)}, {s(sT0)}, {s(sT1)}")
    a(f"s_and_b32 {s(sT1)}, {s(sW)}, 3")
    a(f"s_lshl_b32 {s(sT2)}, {s(sT1)}, 2")
    a(f"s_add_u32 {s(sT0)}, {s(sT0)}, {s(sT2)}")
    a(f"v_lshrrev_b32 {v(vT[0])}, 5, {v(vL)}")
    a(f"v_bfe_u32 {v(vT[1])}, {v(vL)}, 3, 2")
    a(f"v_lshl_add_u32 {v(vT[0])}, {v(vT[0])}, 4, {v(vT[1])}")
    a(f"v_add_u32 {v(vT[0])}, {s(sT0)}, {v(vT[0])}")
    a(f"v_lshl_add_u32 {v(vA0)}, {v(vT[0])}, 10, {v(vChunk)}")
    a(f"v_xor_b32 {v(vA1)}, 64, {v(vA0)}")
    a(f"v_add_u32 {v(vA1)}, {32*1024-1024}, {v(vA1)}")
    a(f"s_lshl_b32 {s(sT0)}, {s(sPT)}, 6")
    a(f"s_lshl_b32 {s(sT1)}, {s(sT1)}, 4")
    a(f"s_add_u32 {s(sT0)}, {s(sT0)}, {s(sT1)}")
    a(f"v_lshrrev_b32 {v(vT[0])}, 3, {v(vL)}")
    a(f"v_add_u32 {v(vT[0])}, {s(sT0)}, {v(vT[0])}")
    a(f"v_lshl_add_u32 {v(vB0)}, {v(vT[0])}, 10, {v(vChunk)}")
    a(f"v_xor_b32 {v(vB1)}, 64, {v(vB0)}")
    a(f"v_add_u32 {v(vB1)}, {8*1024-1024}, {v(vB1)}")
    vCh = va()
    a(f"s_lshr_b32 {s(sT1)}, {s(sW)}, 1")
    a(f"s_lshl_b32 {s(sT1)}, {s(sT1)}, 4")
    a(f"v_add_u32 {v(vCh)}, {s(sT1)}, {v(vn)}")
    a(f"s_lshl_b32 {s(sT0)}, {s(sPT)}, 6")
    a(f"v_add_lshl_u32 {v(vT[0])}, {v(vCh)}, {s(sT0)}, 1")
    a("s_waitcnt lgkmcnt(0)")
    nonce_publish()
    make_srd(a, SRD_X, P_X, 2048 * 1024)
    a(f"s_cmp_lt_u32 {s(sW)}, 4")
    a(f"s_cselect_b32 s{SRD_B}, s{P_BRE}, s{P_BIM}")
    a(f"s_cselect_b32 s{SRD_B+1}, s{P_BRE+1}, s{P_BIM+1}")
    a(f"s_and_b32 s{SRD_B+1}, s{SRD_B+1}, 0xffff")
    a(f"s_mov_b32 s{SRD_B+2}, {hx(512*1024)}")
    a(f"s_mov_b32 s{SRD_B+3}, 0x20000")
    vLre, vLim, vLdt = va(), va(), va()
    a(f"global_load_ushort {v(vLre)}, {v(vT[0])}, s[{P_LRE}:{P_LRE+1}]")
    a(f"global_load_ushort {v(vLim)}, {v(vT[0])}, s[{P_LIM}:{P_LIM+1}]")
    a(f"global_load_ushort {v(vLdt)}, {v(vT[0])}, s[{P_LDT}:{P_LDT+1}]")

    U_STAGE = 32768

    def u_issue(st):
        slot = (st % 4) * U_STAGE
        a(f"s_mov_b32 {s(sKA)}, {st*128}")
        a(f"s_add_u32 m0, {s(sM0A)}, {slot}")
        a("s_nop 0")
        a(f"buffer_load_dwordx4 {v(vA0)}, s[{SRD_X}:{SRD_X+3}], {s(sKA)} offen lds")
        a(f"buffer_load_dwordx4 {v(vA1)}, s[{SRD_X}:{SRD_X+3}], {s(sKA)} offen offset:1024 lds")
        a(f"s_add_u32 m0, {s(sM0A)}, {slot+16384}")
        a("s_nop 0")
        a(f"buffer_load_dwordx4 {v(vB0)}, s[{SRD_B}:{SRD_B+3}], {s(sKA)} offen lds")
        a(f"buffer_load_dwordx4 {v(vB1)}, s[{SRD_B}:{SRD_B+3}], {s(sKA)} offen offset:1024 lds")

    for st in range(4):
        u_issue(st)
    make_srd(a, SRD_WS, P_WS, WS_SIZE)
    a("s_waitcnt vmcnt(16)")
    vla, vlb, lr, li, cr, ci, m16r, m16i, msr, msi = [va() for _ in range(10)]
    W = [va() for _ in range(8)]
    t = vT
    a(f"v_lshlrev_b32 {v(vLre)}, 16, {v(vLre)}")
    a(f"v_lshlrev_b32 {v(vLim)}, 16, {v(vLim)}")
    a(f"v_lshlrev_b32 {v(vLdt)}, 16, {v(vLdt)}")
    a(f"v_mul_f32 {v(t[0])}, {hx(f2u(LOG2E))}, {v(vLdt)}")
    a(f"v_exp_f32 {v(t[0])}, {v(t[0])}")
    a("s_nop 0")
    a(f"v_cvt_pk_bf16_f32 {v(t[0])}, {v(t[0])}, {v(t[0])}")
    a(f"v_lshlrev_b32 {v(t[0])}, 16, {v(t[0])}")
    a(f"v_mul_f32 {v(vla)}, {v(t[0])}, {v(vLre)}")
    a(f"v_mul_f32 {v(vlb)}, {v(t[0])}, {v(vLim)}")
    a(f"v_mul_f32 {v(vla)}, {hx(f2u(LOG2E))}, {v(vla)}")
    a(f"v_mul_f32 {v(vlb)}, {hx(f2u(1.0/(2*math.pi)))}, {v(vlb)}")
    a(f"v_mov_b32 {v(t[1])}, 1.0")
    cpow(a, lr, li, t[1], vla, vlb, t[2])
    a(f"v_mul_f32 {v(t[2])}, {v(vLre)}, {v(vLre)}")
    a(f"v_fma_f32 {v(t[2])}, {v(vLim)}, {v(vLim)}, {v(t[2])}")
    a(f"v_rcp_f32 {v(t[2])}, {v(t[2])}")
    a(f"v_add_f32 {v(t[3])}, -1.0, {v(lr)}")
    a(f"v_add_f32 {v(t[2])}, {v(t[2])}, {v(t[2])}")
    a(f"v_mul_f32 {v(cr)}, {v(t[3])}, {v(vLre)}")
    a(f"v_fma_f32 {v(cr)}, {v(li)}, {v(vLim)}, {v(cr)}")
    a(f"v_mul_f32 {v(ci)}, {v(li)}, {v(vLre)}")
    a(f"v_fma_f32 {v(ci)}, -{v(t[3])}, {v(vLim)}, {v(ci)}")
    a(f"v_mul_f32 {v(cr)}, {v(cr)}, {v(t[2])}")
    a(f"v_mul_f32 {v(ci)}, {v(ci)}, {v(t[2])}")
    a(f"v_mov_b32 {v(t[1])}, {hx(f2u(16.0))}")
    cpow(a, m16r, m16i, t[1], vla, vlb, t[2])
    vSeg = va()
    a(f"s_and_b32 {s(sT0)}, {s(sW)}, 1")
    a(f"s_lshl_b32 {s(sT0)}, {s(sT0)}, 2")
    a(f"v_add_u32 {v(vSeg)}, {s(sT0)}, {v(vq)}")
    a(f"v_lshlrev_b32 {v(t[1])}, 4, {v(vSeg)}")
    a(f"v_cvt_f32_u32 {v(t[1])}, {v(t[1])}")
    cpow(a, msr, msi, t[1], vla, vlb, t[2])
    for i in range(4):
        a(f"s_sub_i32 {s(sT0)}, {s(sRB)}, {1+4*i}")
        a(f"v_sub_u32 {v(t[3])}, {s(sT0)}, {v(vq)}")
        a(f"v_cmp_le_i32 vcc, 0, {v(t[3])}")
        a(f"v_max_i32 {v(t[1])}, 0, {v(t[3])}")
        a(f"v_lshlrev_b32 {v(t[1])}, 7, {v(t[1])}")
        a(f"v_cvt_f32_u32 {v(t[1])}, {v(t[1])}")
        cpow(a, W[2*i], W[2*i+1], t[1], vla, vlb, t[2])
        a(f"v_cndmask_b32 {v(W[2*i])}, 0, {v(W[2*i])}, vcc")
        a(f"v_cndmask_b32 {v(W[2*i+1])}, 0, {v(W[2*i+1])}, vcc")
    vRA0, vRA1, vRB0, vRB1 = va(), va(), va(), va()
    a(f"s_and_b32 {s(sT0)}, {s(sW)}, 1")
    a(f"s_lshl_b32 {s(sT0)}, {s(sT0)}, 13")
    a(f"v_add_u32 {v(vRA0)}, {s(sT0)}, {v(vRA)}")
    a(f"v_xor_b32 {v(vRA1)}, 64, {v(vRA0)}")
    a(f"s_lshr_b32 {s(sT0)}, {s(sW)}, 1")
    a(f"s_lshl_b32 {s(sT0)}, {s(sT0)}, 11")
    a(f"v_add_u32 {v(vRB0)}, {s(sT0)}, {v(vRA)}")
    a(f"v_xor_b32 {v(vRB1)}, 64, {v(vRB0)}")
    RA = [LdsAddr(a, va, r, 131071) for r in (vRA0, vRA1)]
    RB = [LdsAddr(a, va, r, 131071) for r in (vRB0, vRB1)]
    fa = [[va(4, 4) for u in range(4)] for kk in range(2)]
    fb = [[va(4, 4) for p in range(2)] for kk in range(2)]
    acc = [[va(4, 4) for u in range(4)] for p in range(2)]
    issued = 4
    for st in range(8):
        ahead = issued - st - 1
        extra = 1 if st > 5 else 0
        a(f"s_waitcnt vmcnt({ahead*4 + extra})")
        a("s_barrier")
        slot = (st % 4) * U_STAGE
        q = LgQ(a)
        tok = {}
        for kk in range(2):
            tok[('b', kk, 0)] = q.issue(f"ds_read_b128 {v(fb[kk][0],4)}, {RB[kk].at(slot+16384)}")
            tok[('a', kk, 0)] = q.issue(f"ds_read_b128 {v(fa[kk][0],4)}, {RA[kk].at(slot)}")
            tok[('b', kk, 1)] = q.issue(f"ds_read_b128 {v(fb[kk][1],4)}, {RB[kk].at(slot+16384+8192)}")
            for u in range(1, 4):
                tok[('a', kk, u)] = q.issue(f"ds_read_b128 {v(fa[kk][u],4)}, {RA[kk].at(slot+u*2048)}")
        if st >= 1 and issued < 8:
            u_issue(issued)
            issued += 1
        if st == 5:
            fetch_nonce_issue(a, vN, vZero)
        for kk in range(2):
            for u in range(4):
                for p in range(2):
                    q.need(max(tok[('a', kk, u)], tok[('b', kk, p)]))
                    c = "0" if (st == 0 and kk == 0) else v(acc[p][u], 4)
                    a(f"v_mfma_f32_16x16x32_bf16 {v(acc[p][u],4)}, {v(fa[kk][u],4)}, {v(fb[kk][p],4)}, {c}")
    a("s_nop 7")
    re = [acc[0][i // 4] + i % 4 for i in range(16)]
    im = [acc[1][i // 4] + i % 4 for i in range(16)]
    er, ei = va(2), None
    ei = er + 1
    for i in range(16):
        tr, ti = t[(2*i) % 8], t[(2*i+1) % 8]
        a(f"v_mul_f32 {v(tr)}, {v(cr)}, {v(re[i])}")
        a(f"v_mul_f32 {v(ti)}, {v(cr)}, {v(im[i])}")
        a(f"v_fma_f32 {v(tr)}, -{v(ci)}, {v(im[i])}, {v(tr)}")
        a(f"v_fma_f32 {v(im[i])}, {v(ci)}, {v(re[i])}, {v(ti)}")
        a(f"v_mov_b32 {v(re[i])}, {v(tr)}")
    e2 = va(2)
    cur, nxt = (er, ei), (e2, e2 + 1)
    a(f"v_mov_b32 {v(cur[0])}, {v(re[0])}")
    a(f"v_mov_b32 {v(cur[1])}, {v(im[0])}")
    for i in range(1, 16):
        cfma(a, nxt[0], nxt[1], lr, li, cur[0], cur[1], re[i], im[i])
        cur, nxt = nxt, cur
    EX = 131072
    vEx = va()
    a(f"v_lshlrev_b32 {v(vEx)}, 6, {v(vCh)}")
    a(f"v_add_u32 {v(vEx)}, {hx(EX)}, {v(vEx)}")
    a(f"v_lshl_add_u32 {v(t[0])}, {v(vSeg)}, 3, {v(vEx)}")
    a(f"ds_write_b64 {v(t[0])}, {v(cur[0],2)}")
    a("s_waitcnt lgkmcnt(0)")
    a("s_barrier")
    es = fa[0][0]
    assert fa[0][3] == es + 12
    for i in range(4):
        a(f"ds_read_b128 {v(es+4*i,4)}, {v(vEx)} offset:{16*i}")
    fetch_nonce_finish(a, vN, vZero, sCnt)
    a("s_waitcnt lgkmcnt(0)")
    pr, pi = va(), va()
    a(f"v_mov_b32 {v(pr)}, 0")
    a(f"v_mov_b32 {v(pi)}, 0")
    G4 = fb[0][0]
    hr, hi_ = es, es + 1
    for k in range(1, 8):
        a(f"v_cmp_eq_u32 vcc, {k}, {v(vSeg)}")
        a("s_nop 1")
        a(f"v_cndmask_b32 {v(pr)}, {v(pr)}, {v(hr)}, vcc")
        a(f"v_cndmask_b32 {v(pi)}, {v(pi)}, {v(hi_)}, vcc")
        if k < 7:
            cfma(a, es + 2*k, es + 2*k + 1, m16r, m16i, hr, hi_, es + 2*k, es + 2*k + 1)
        else:
            cfma(a, G4, G4 + 1, m16r, m16i, hr, hi_, es + 2*k, es + 2*k + 1)
        hr, hi_ = es + 2*k, es + 2*k + 1
    a(f"v_mov_b32 {v(G4+2)}, {v(vN)}")
    a(f"v_mov_b32 {v(G4+3)}, {v(vN+1)}")
    vSc = va()
    a(f"s_lshl_b32 {s(sT0)}, {s(sPT)}, 14")
    a(f"s_add_u32 {s(sT0)}, {s(sT0)}, {hx(SC_OFF)}")
    a(f"v_lshl_add_u32 {v(vSc)}, {v(vCh)}, 4, {s(sT0)}")
    a(f"s_lshl_b32 {s(sT1)}, {s(sRB)}, 10")
    lp = a.newlabel("nopubE")
    a(f"v_cmp_eq_u32 vcc, 0, {v(vSeg)}")
    a(f"s_and_saveexec_b64 s[14:15], vcc")
    a(f"s_cbranch_execz {lp}")
    a(f"buffer_store_dwordx4 {v(G4,4)}, {v(vSc)}, s[{SRD_WS}:{SRD_WS+3}], {s(sT1)} offen sc1")
    a.label(lp)
    a("s_mov_b64 exec, s[14:15]")
    vPo = va()
    a(f"v_lshl_add_u32 {v(vPo)}, {v(vq)}, 10, {v(vSc)}")
    GP = [fa[1][i] for i in range(4)]
    need_m = [76, 78, 80, 82]
    for i in range(4):
        a(f"v_add_u32 {v(t[0])}, {4*i}, {v(vq)}")
        a(f"v_cmp_le_u32 s[{need_m[i]}:{need_m[i]+1}], {s(sRB)}, {v(t[0])}")
    a(f"s_mov_b32 {s(sT0)}, 4096")
    a(f"s_mov_b32 {s(sT1)}, 8192")
    a(f"s_mov_b32 {s(sT2)}, 12288")
    a(f"s_mov_b32 {s(sCnt)}, 0x100000")
    PL, PD = a.newlabel("poll"), a.newlabel("polled")
    a.label(PL)
    for i, so in enumerate(("0", s(sT0), s(sT1), s(sT2))):
        a(f"buffer_load_dwordx4 {v(GP[i],4)}, {v(vPo)}, s[{SRD_WS}:{SRD_WS+3}], {so} offen sc1")
    a("s_mov_b64 s[14:15], -1")
    a("s_waitcnt vmcnt(0)")
    for i in range(4):
        a(f"v_cmp_eq_u32 vcc, {v(GP[i]+2)}, {v(vN)}")
        a(f"v_cmp_eq_u32 s[84:85], {v(GP[i]+3)}, {v(vN+1)}")
        a("s_nop 0")
        a(f"s_and_b64 vcc, vcc, s[84:85]")
        a(f"s_or_b64 vcc, vcc, s[{need_m[i]}:{need_m[i]+1}]")
        a(f"s_and_b64 s[14:15], s[14:15], vcc")
    a("s_cmp_eq_u64 s[14:15], -1")
    a(f"s_cbranch_scc1 {PD}")
    a(f"s_sub_u32 {s(sCnt)}, {s(sCnt)}, 1")
    a(f"s_cbranch_scc1 {PD}")
    a("s_sleep 1")
    a(f"s_branch {PL}")
    a.label(PD)
    for i in range(4):
        a(f"v_cndmask_b32 {v(GP[i])}, {v(GP[i])}, 0, s[{need_m[i]}:{need_m[i]+1}]")
        a(f"v_cndmask_b32 {v(GP[i]+1)}, {v(GP[i]+1)}, 0, s[{need_m[i]}:{need_m[i]+1}]")
    cmul(a, t[0], t[1], W[0], W[1], GP[0], GP[0] + 1)
    for i in range(1, 4):
        cfma(a, t[0], t[1], W[2*i], W[2*i+1], GP[i], GP[i] + 1, t[0], t[1])
    for sw in ("v_permlane16_swap_b32", "v_permlane32_swap_b32"):
        a(f"v_mov_b32 {v(t[2])}, {v(t[0])}")
        a(f"v_mov_b32 {v(t[3])}, {v(t[1])}")
        a("s_nop 1")
        a(f"{sw} {v(t[0])}, {v(t[2])}")
        a(f"{sw} {v(t[1])}, {v(t[3])}")
        a(f"v_add_f32 {v(t[0])}, {v(t[0])}, {v(t[2])}")
        a(f"v_add_f32 {v(t[1])}, {v(t[1])}, {v(t[3])}")
    cfma(a, pr, pi, msr, msi, t[0], t[1], pr, pi)
    prev = (pr, pi)
    for i in range(16):
        cfma(a, re[i], im[i], lr, li, prev[0], prev[1], re[i], im[i])
        prev = (re[i], im[i])
    o = [fa[0][0], fa[0][1], fa[0][2], fa[0][3]]
    a(f"v_and_b32 {v(t[0])}, 3, {v(vCh)}")
    a(f"v_lshlrev_b32 {v(t[0])}, 1, {v(t[0])}")
    a(f"v_xor_b32 {v(t[0])}, {v(t[0])}, {v(vSeg)}")
    a(f"v_lshlrev_b32 {v(t[0])}, 5, {v(t[0])}")
    a(f"v_lshl_add_u32 {v(t[0])}, {v(vCh)}, 8, {v(t[0])}")
    a(f"s_lshl_b32 {s(sT0)}, {s(sRB)}, 18")
    a(f"s_lshl_b32 {s(sT1)}, {s(sPT)}, 15")
    a(f"s_add_u32 {s(sT0)}, {s(sT0)}, {s(sT1)}")
    a(f"s_add_u32 {s(sT0)}, {s(sT0)}, {hx(H_OFF)}")
    a(f"s_add_u32 {s(sT1)}, {s(sT0)}, 16384")
    for i in range(8):
        a(f"v_cvt_pk_bf16_f32 {v(o[0]+i)}, {v(re[2*i])}, {v(re[2*i+1])}")
    for i in range(8):
        a(f"v_cvt_pk_bf16_f32 {v(o[2]+i)}, -{v(im[2*i])}, -{v(im[2*i+1])}")
    a(f"buffer_store_dwordx4 {v(o[0],4)}, {v(t[0])}, s[{SRD_WS}:{SRD_WS+3}], {s(sT0)} offen")
    a(f"buffer_store_dwordx4 {v(o[1],4)}, {v(t[0])}, s[{SRD_WS}:{SRD_WS+3}], {s(sT0)} offen offset:16")
    a(f"buffer_store_dwordx4 {v(o[2],4)}, {v(t[0])}, s[{SRD_WS}:{SRD_WS+3}], {s(sT1)} offen")
    a(f"buffer_store_dwordx4 {v(o[3],4)}, {v(t[0])}, s[{SRD_WS}:{SRD_WS+3}], {s(sT1)} offen offset:16")
    a("s_endpgm")
    hiU = va.hi

    va.release(mark)
    a.label("k1_z")
    Z_STAGE = 40960
    sIsZ2 = 13
    a(f"s_and_b32 {s(sT0)}, {s(sC)}, 1")
    a(f"s_lshl_b32 {s(sTile)}, {s(sHalf)}, 1")
    a(f"s_add_u32 {s(sTile)}, {s(sTile)}, {s(sT0)}")
    a(f"s_cmp_ge_u32 {s(sC)}, 6")
    a(f"s_cselect_b32 {s(sIsZ2)}, 1, 0")
    vB = va()
    a(f"s_lshl_b32 {s(sT0)}, {s(sRB)}, 7")
    a(f"s_lshr_b32 {s(sT1)}, {s(sW)}, 1")
    a(f"s_lshl_b32 {s(sT1)}, {s(sT1)}, 5")
    a(f"s_add_u32 {s(sT0)}, {s(sT0)}, {s(sT1)}")
    a(f"s_and_b32 {s(sT1)}, {s(sW)}, 1")
    a(f"s_lshl_b32 {s(sT1)}, {s(sT1)}, 2")
    a(f"s_add_u32 {s(sT0)}, {s(sT0)}, {s(sT1)}")
    a(f"v_lshrrev_b32 {v(vT[0])}, 5, {v(vL)}")
    a(f"v_bfe_u32 {v(vT[1])}, {v(vL)}, 3, 2")
    a(f"v_lshl_add_u32 {v(vT[0])}, {v(vT[0])}, 3, {v(vT[1])}")
    a(f"v_add_u32 {v(vT[0])}, {s(sT0)}, {v(vT[0])}")
    a(f"v_lshl_add_u32 {v(vA0)}, {v(vT[0])}, 10, {v(vChunk)}")
    a(f"v_xor_b32 {v(vA1)}, 64, {v(vA0)}")
    a(f"v_add_u32 {v(vA1)}, {16*1024-1024}, {v(vA1)}")
    a(f"s_mul_i32 {s(sT0)}, {s(sTile)}, 352")
    a(f"s_mul_i32 {s(sT1)}, {s(sIsZ2)}, 1376")
    a(f"s_add_u32 {s(sT0)}, {s(sT0)}, {s(sT1)}")
    a(f"v_lshrrev_b32 {v(vT[0])}, 2, {v(vL)}")
    a(f"v_mul_u32_u24 {v(vT[0])}, 2752, {v(vT[0])}")
    a(f"v_lshrrev_b32 {v(vT[1])}, 5, {v(vL)}")
    a(f"v_lshlrev_b32 {v(vT[1])}, 1, {v(vT[1])}")
    a(f"v_and_b32 {v(vT[2])}, 3, {v(vL)}")
    a(f"v_xor_b32 {v(vT[1])}, {v(vT[1])}, {v(vT[2])}")
    a(f"v_lshl_add_u32 {v(vT[0])}, {v(vT[1])}, 4, {v(vT[0])}")
    a(f"v_add_u32 {v(vB)}, {s(sT0)}, {v(vT[0])}")
    a(f"s_mul_i32 {s(sM0B)}, {s(sW)}, 3072")
    for e in range(3):
        a(f"s_mul_i32 {s(sT0)}, {s(sW)}, 3")
        a(f"s_add_u32 {s(sT0)}, {s(sT0)}, {e}")
        a(f"s_and_b32 {s(sT1)}, {s(sT0)}, 3")
        a(f"s_mul_i32 {s(sT1)}, {s(sT1)}, {16*2752}")
        a(f"s_lshr_b32 {s(sT0)}, {s(sT0)}, 2")
        a(f"s_lshl_b32 {s(sT0)}, {s(sT0)}, 6")
        a(f"s_add_u32 {s(sOffB[e])}, {s(sT0)}, {s(sT1)}")
    a("s_waitcnt lgkmcnt(0)")
    make_srd(a, SRD_X, P_X, 2048 * 1024)
    make_srd(a, SRD_B, P_WIN, 512 * 2752)

    def z_issue(st):
        slot = (st % 4) * Z_STAGE
        a(f"s_mov_b32 {s(sKA)}, {st*128}")
        a(f"s_add_u32 m0, {s(sM0A)}, {slot}")
        a("s_nop 0")
        a(f"buffer_load_dwordx4 {v(vA0)}, s[{SRD_X}:{SRD_X+3}], {s(sKA)} offen lds")
        a(f"buffer_load_dwordx4 {v(vA1)}, s[{SRD_X}:{SRD_X+3}], {s(sKA)} offen offset:1024 lds")
        for e in range(3):
            a(f"s_add_u32 m0, {s(sM0B)}, {slot+16384+e*1024}")
            a(f"s_add_u32 {s(sKA)}, {s(sOffB[e])}, {st*64*2752}")
            a(f"buffer_load_dwordx4 {v(vB)}, s[{SRD_B}:{SRD_B+3}], {s(sKA)} offen lds")

    for st in range(4):
        z_issue(st)
    make_srd(a, SRD_WS, P_WS, WS_SIZE)
    k = 2.0 * math.sqrt(2.0 / math.pi)
    a(f"s_mov_b32 {s(sGA)}, {hx(f2u(-k*LOG2E))}")
    a(f"s_mov_b32 {s(sGB)}, {hx(f2u(-k*LOG2E*0.044715))}")
    vRA0, vRA1, vRB0, vRB1 = va(), va(), va(), va()
    a(f"s_and_b32 {s(sT0)}, {s(sW)}, 3")
    a(f"s_lshl_b32 {s(sT0)}, {s(sT0)}, 12")
    a(f"v_add_u32 {v(vRA0)}, {s(sT0)}, {v(vRA)}")
    a(f"v_xor_b32 {v(vRA1)}, 64, {v(vRA0)}")
    a(f"v_lshrrev_b32 {v(vT[0])}, 2, {v(vn)}")
    a(f"v_lshl_add_u32 {v(vT[0])}, {v(vq)}, 3, {v(vT[0])}")
    a(f"v_lshlrev_b32 {v(vT[0])}, 6, {v(vT[0])}")
    a(f"v_and_b32 {v(vT[1])}, 1, {v(vq)}")
    a(f"v_lshl_add_u32 {v(vT[0])}, {v(vT[1])}, 5, {v(vT[0])}")
    a(f"v_and_b32 {v(vT[1])}, 3, {v(vn)}")
    a(f"v_lshl_add_u32 {v(vT[0])}, {v(vT[1])}, 3, {v(vT[0])}")
    a(f"s_lshr_b32 {s(sT0)}, {s(sW)}, 2")
    a(f"s_mul_i32 {s(sT0)}, {s(sT0)}, 12288")
    a(f"v_add_u32 {v(vRB0)}, {s(sT0)}, {v(vT[0])}")
    a(f"v_xor_b32 {v(vRB1)}, 32, {v(vRB0)}")
    RA = [LdsAddr(a, va, r, 163839) for r in (vRA0, vRA1)]
    RB = [LdsAddr(a, va, r, 163839) for r in (vRB0, vRB1)]
    fa = [[va(4, 4) for um in range(2)] for kk in range(2)]
    fb = [[va(4, 4) for e in range(6)] for kk in range(2)]
    acc = [[va(4, 4) for e in range(6)] for um in range(2)]
    gt = va(8)
    mark2 = va.mark()
    a(f"s_lshr_b32 {s(sT0)}, {s(sW)}, 2")
    a(f"s_lshl_b32 {s(sT1)}, {s(sIsZ2)}, 1")
    a(f"s_add_u32 {s(sT0)}, {s(sT0)}, {s(sT1)}")
    a(f"s_cmp_eq_u32 {s(sT0)}, 1")
    a("s_cbranch_scc1 k1_z_v1")
    a(f"s_cmp_eq_u32 {s(sT0)}, 2")
    a("s_cbranch_scc1 k1_z_v2")
    a(f"s_cmp_eq_u32 {s(sT0)}, 3")
    a("s_cbranch_scc1 k1_z_v3")
    for variant in range(4):
        z2, wn = variant >> 1, variant & 1
        NU = 6 if wn == 0 else 5
        va.release(mark2)
        a.label(f"k1_z_v{variant}")
        issued = 4
        for st in range(8):
            ahead = issued - st - 1
            extra = 1 if (st > 5 and z2) else 0
            a(f"s_waitcnt vmcnt({ahead*5 + extra})")
            a("s_barrier")
            slot = (st % 4) * Z_STAGE
            q = LgQ(a)
            tok = {}
            reads = []
            for kk in range(2):
                for e in range(NU):
                    if e < 2:
                        reads.append((('a', kk, e), f"ds_read_b128 {v(fa[kk][e],4)}, {RA[kk].at(slot+e*2048)}"))
                    base = slot + 16384 + (e >> 1) * 4096 + kk * 2048
                    reads.append((('b0', kk, e), f"ds_read_b64_tr_b16 {v(fb[kk][e],2)}, {RB[e&1].at(base)}"))
                    reads.append((('b', kk, e), f"ds_read_b64_tr_b16 {v(fb[kk][e]+2,2)}, {RB[e&1].at(base+256)}"))
            ri = 0

            def issue_reads(n):
                nonlocal ri
                for _ in range(n):
                    if ri < len(reads):
                        tok[reads[ri][0]] = q.issue(reads[ri][1])
                        ri += 1
            issue_reads(14)
            if st >= 1 and issued < 8:
                z_issue(issued)
                issued += 1
            if st == 5 and z2:
                fetch_nonce_issue(a, vN, vZero)
            for kk in range(2):
                for e in range(NU):
                    for um in range(2):
                        while ('a', kk, um) not in tok or ('b', kk, e) not in tok:
                            issue_reads(1)
                        q.need(max(tok[('a', kk, um)], tok[('b', kk, e)]))
                        c = "0" if (st == 0 and kk == 0) else v(acc[um][e], 4)
                        if z2:
                            a(f"v_mfma_f32_16x16x32_bf16 {v(acc[um][e],4)}, {v(fa[kk][um],4)}, {v(fb[kk][e],4)}, {c}")
                        else:
                            a(f"v_mfma_f32_16x16x32_bf16 {v(acc[um][e],4)}, {v(fb[kk][e],4)}, {v(fa[kk][um],4)}, {c}")
                        issue_reads(1)
        a(f"v_mov_b32 {v(gt+7)}, {s(sGA)}")
        a("s_nop 7")
        allacc = [acc[um][e] + r for e in range(NU) for um in range(2) for r in range(4)]
        gelu(a, allacc, gt, sGA, sGB)
        t = vT
        if not z2:
            a(f"s_lshl_b32 {s(sT0)}, {s(sRB)}, 7")
            a(f"s_and_b32 {s(sT1)}, {s(sW)}, 3")
            a(f"s_lshl_b32 {s(sT1)}, {s(sT1)}, 5")
            a(f"s_add_u32 {s(sT0)}, {s(sT0)}, {s(sT1)}")
            a(f"v_lshrrev_b32 {v(t[0])}, 2, {v(vn)}")
            a(f"v_and_b32 {v(t[1])}, 3, {v(vn)}")
            a(f"v_lshl_add_u32 {v(t[0])}, {v(t[0])}, 3, {v(t[1])}")
            a(f"v_add_u32 {v(t[0])}, {s(sT0)}, {v(t[0])}")
            a(f"v_mul_u32_u24 {v(t[0])}, {Z1_STRIDE}, {v(t[0])}")
            a(f"v_lshl_add_u32 {v(t[0])}, {v(vq)}, 3, {v(t[0])}")
            a(f"s_mul_i32 {s(sT0)}, {s(sTile)}, 352")
            a(f"s_add_u32 {s(sT0)}, {s(sT0)}, {Z1_OFF + wn*192}")
            a(f"s_add_u32 {s(sT1)}, {s(sT0)}, {4*Z1_STRIDE}")
            for e in range(NU):
                for um in range(2):
                    r = acc[um][e]
                    a(f"v_cvt_pk_bf16_f32 {v(r)}, {v(r)}, {v(r+1)}")
                    a(f"v_cvt_pk_bf16_f32 {v(r+1)}, {v(r+2)}, {v(r+3)}")
                    a(f"buffer_store_dwordx2 {v(r,2)}, {v(t[0])}, s[{SRD_WS}:{SRD_WS+3}], {s(sT1 if um else sT0)} offen offset:{e*32}")
            a("s_endpgm")
            continue
        if wn == 1:
            a(f"s_cmp_eq_u32 {s(sTile)}, 3")
            a(f"s_cselect_b32 {s(sMask)}, 0, 1.0")
            for um in range(2):
                for r in range(4):
                    a(f"v_mul_f32 {v(acc[um][4]+r)}, {s(sMask)}, {v(acc[um][4]+r)}")
        st_ = fb[0][0]
        assert fb[0][3] == st_ + 12
        for um in range(2):
            for r in range(4):
                j = 4 * um + r
                a(f"v_add_f32 {v(st_+2*j)}, {v(acc[um][0]+r)}, {v(acc[um][1]+r)}")
                a(f"v_mul_f32 {v(st_+2*j+1)}, {v(acc[um][0]+r)}, {v(acc[um][0]+r)}")
        for e in range(1, NU):
            for um in range(2):
                for r in range(4):
                    j = 4 * um + r
                    if e >= 2:
                        a(f"v_add_f32 {v(st_+2*j)}, {v(st_+2*j)}, {v(acc[um][e]+r)}")
                    a(f"v_fmac_f32 {v(st_+2*j+1)}, {v(acc[um][e]+r)}, {v(acc[um][e]+r)}")
        for sh in (8, 4, 2, 1):
            for j in range(16):
                a(f"v_add_f32_dpp {v(st_+j)}, {v(st_+j)}, {v(st_+j)} row_ror:{sh} row_mask:0xf bank_mask:0xf")
        a(f"s_and_b32 {s(sT0)}, {s(sW)}, 3")
        a(f"s_lshl_b32 {s(sT0)}, {s(sT0)}, 8")
        vRow = va()
        a(f"v_lshl_add_u32 {v(vRow)}, {v(vq)}, 6, {s(sT0)}")
        a(f"v_cmp_eq_u32 vcc, 0, {v(vn)}")
        a("s_and_saveexec_b64 s[14:15], vcc")
        for i in range(4):
            a(f"ds_write_b128 {v(vRow)}, {v(st_+4*i,4)} offset:{wn*1024+16*i}")
        a("s_mov_b64 exec, s[14:15]")
        a("s_waitcnt lgkmcnt(0)")
        a("s_barrier")
        if wn == 0:
            skip = a.newlabel("lnskip")
            a(f"s_cmp_ge_u32 {s(sW)}, 2")
            a(f"s_cbranch_scc1 {skip}")
            G4 = fb[1][0]
            GP = [fb[1][1], fb[1][2], fb[1][3]]
            a(f"v_lshlrev_b32 {v(t[0])}, 3, v0")
            a(f"ds_read_b64 {v(G4,2)}, {v(t[0])}")
            a(f"ds_read_b64 {v(G4+2,2)}, {v(t[0])} offset:1024")
            fetch_nonce_finish(a, vN, vZero, sCnt)
            a("s_waitcnt lgkmcnt(0)")
            a(f"v_add_f32 {v(G4)}, {v(G4)}, {v(G4+2)}")
            a(f"v_add_f32 {v(G4+1)}, {v(G4+1)}, {v(G4+3)}")
            a(f"v_mov_b32 {v(G4+2)}, {v(vN)}")
            a(f"v_mov_b32 {v(G4+3)}, {v(vN+1)}")
            a(f"s_lshl_b32 {s(sT0)}, {s(sRB)}, 13")
            a(f"s_add_u32 {s(sT0)}, {s(sT0)}, {hx(LN_OFF)}")
            a(f"v_lshl_add_u32 {v(t[1])}, v0, 4, {s(sT0)}")
            a(f"s_lshl_b32 {s(sT0)}, {s(sTile)}, 11")
            a(f"buffer_store_dwordx4 {v(G4,4)}, {v(t[1])}, s[{SRD_WS}:{SRD_WS+3}], {s(sT0)} offen sc1")
            so = [sSt, sSt + 1, sSt + 2]
            for i in range(3):
                a(f"s_add_u32 {s(so[i])}, {s(sTile)}, {i+1}")
                a(f"s_and_b32 {s(so[i])}, {s(so[i])}, 3")
                a(f"s_lshl_b32 {s(so[i])}, {s(so[i])}, 11")
            a(f"s_mov_b32 {s(sCnt)}, 0x100000")
            PL, PD = a.newlabel("poll"), a.newlabel("polled")
            a.label(PL)
            for i in range(3):
                a(f"buffer_load_dwordx4 {v(GP[i],4)}, {v(t[1])}, s[{SRD_WS}:{SRD_WS+3}], {s(so[i])} offen sc1")
            a("s_mov_b64 s[14:15], -1")
            a("s_waitcnt vmcnt(0)")
            for i in range(3):
                a(f"v_cmp_eq_u32 vcc, {v(GP[i]+2)}, {v(vN)}")
                a(f"v_cmp_eq_u32 s[84:85], {v(GP[i]+3)}, {v(vN+1)}")
                a("s_nop 0")
                a(f"s_and_b64 vcc, vcc, s[84:85]")
                a(f"s_and_b64 s[14:15], s[14:15], vcc")
            a("s_cmp_eq_u64 s[14:15], -1")
            a(f"s_cbranch_scc1 {PD}")
            a(f"s_sub_u32 {s(sCnt)}, {s(sCnt)}, 1")
            a(f"s_cbranch_scc1 {PD}")
            a("s_sleep 1")
            a(f"s_branch {PL}")
            a.label(PD)
            for i in range(3):
                a(f"v_add_f32 {v(G4)}, {v(G4)}, {v(GP[i])}")
                a(f"v_add_f32 {v(G4+1)}, {v(G4+1)}, {v(GP[i]+1)}")
            a(f"v_mul_f32 {v(G4)}, {hx(f2u(1.0/688))}, {v(G4)}")
            a(f"v_mul_f32 {v(G4+1)}, {hx(f2u(1.0/688))}, {v(G4+1)}")
            a(f"v_fma_f32 {v(G4+1)}, -{v(G4)}, {v(G4)}, {v(G4+1)}")
            a(f"v_max_f32 {v(G4+1)}, 0, {v(G4+1)}")
            a(f"v_add_f32 {v(G4+1)}, {hx(f2u(1e-5))}, {v(G4+1)}")
            a(f"v_rsq_f32 {v(G4+2)}, {v(G4+1)}")
            a("s_nop 0")
            a(f"v_mul_f32 {v(G4+3)}, -{v(G4)}, {v(G4+2)}")
            a(f"ds_write_b64 {v(t[0])}, {v(G4+2,2)} offset:2048")
            a("s_waitcnt lgkmcnt(0)")
            a.label(skip)
        a("s_barrier")
        for i in range(4):
            a(f"ds_read_b128 {v(st_+4*i,4)}, {v(vRow)} offset:{2048+16*i}")
        a(f"v_and_b32 {v(t[0])}, 3, {v(vn)}")
        a(f"v_bfe_u32 {v(t[1])}, {v(vn)}, 3, 1")
        a(f"v_lshl_add_u32 {v(t[0])}, {v(t[1])}, 2, {v(t[0])}")
        a(f"v_bfe_u32 {v(t[1])}, {v(vn)}, 2, 1")
        a(f"v_lshl_add_u32 {v(t[0])}, {v(t[1])}, 3, {v(t[0])}")
        a(f"s_and_b32 {s(sT0)}, {s(sW)}, 1")
        a(f"s_lshl_b32 {s(sT0)}, {s(sT0)}, 2")
        a(f"v_add_u32 {v(t[1])}, {s(sT0)}, {v(vq)}")
        a(f"v_lshrrev_b32 {v(t[2])}, 1, {v(t[0])}")
        a(f"v_xor_b32 {v(t[1])}, {v(t[1])}, {v(t[2])}")
        a(f"v_lshlrev_b32 {v(t[1])}, 4, {v(t[1])}")
        a(f"v_lshl_add_u32 {v(t[0])}, {v(t[0])}, 7, {v(t[1])}")
        a(f"s_bfe_u32 {s(sT0)}, {s(sW)}, 0x10001")
        a(f"s_lshl_b32 {s(sT1)}, {s(sRB)}, 1")
        a(f"s_add_u32 {s(sT0)}, {s(sT0)}, {s(sT1)}")
        a(f"s_lshl_b32 {s(sT0)}, {s(sT0)}, 13")
        a(f"s_add_u32 {s(sT0)}, {s(sT0)}, {hx(Z2N_OFF)}")
        a(f"s_mul_i32 {s(sT1)}, {s(sTile)}, 11")
        for e in range(NU):
            a(f"s_add_u32 {s(sT2)}, {s(sT1)}, {6*wn+e}")
            a(f"s_lshr_b32 {s(sSt+e)}, {s(sT2)}, 2")
            a(f"s_lshl_b32 {s(sSt+e)}, {s(sSt+e)}, 18")
            a(f"s_and_b32 {s(sT2)}, {s(sT2)}, 3")
            a(f"s_lshl_b32 {s(sT2)}, {s(sT2)}, 11")
            a(f"s_add_u32 {s(sSt+e)}, {s(sSt+e)}, {s(sT2)}")
            a(f"s_add_u32 {s(sSt+e)}, {s(sSt+e)}, {s(sT0)}")
        a("s_waitcnt lgkmcnt(0)")
        for e in range(NU):
            for um in range(2):
                for r in range(4):
                    j = 4 * um + r
                    x = acc[um][e] + r
                    a(f"v_fma_f32 {v(x)}, {v(x)}, {v(st_+2*j)}, {v(st_+2*j+1)}")
            o = fb[1][e]
            a(f"v_cvt_pk_bf16_f32 {v(o)}, {v(acc[0][e])}, {v(acc[0][e]+1)}")
            a(f"v_cvt_pk_bf16_f32 {v(o+1)}, {v(acc[0][e]+2)}, {v(acc[0][e]+3)}")
            a(f"v_cvt_pk_bf16_f32 {v(o+2)}, {v(acc[1][e])}, {v(acc[1][e]+1)}")
            a(f"v_cvt_pk_bf16_f32 {v(o+3)}, {v(acc[1][e]+2)}, {v(acc[1][e]+3)}")
            a(f"buffer_store_dwordx4 {v(o,4)}, {v(t[0])}, s[{SRD_WS}:{SRD_WS+3}], {s(sSt+e)} offen")
        a("s_endpgm")
    a.label("k1_end")
    a("s_endpgm")
    return max(hiU, va.hi)


def ring_loader(a, nsteps, R, per_stage, issue):
    for st in range(min(R, nsteps)):
        issue(st)
    issued = min(R, nsteps)
    for k in range(nsteps):
        a(f"s_waitcnt vmcnt({(issued - k - 1) * per_stage})")
        a("s_barrier")
        if k >= 1 and issued < nsteps:
            issue(issued)
            issued += 1
    a("s_endpgm")


def ring_consumer(a, nsteps, reads, mfmas, rpm):
    a("s_barrier")
    for r in reads(0):
        a(r)
    for k in range(nsteps):
        a("s_waitcnt lgkmcnt(0)")
        rd = []
        if k + 1 < nsteps:
            a("s_barrier")
            rd = reads(k + 1)
        ms = mfmas(k)
        ri = 0
        for m in ms:
            a(m)
            for _ in range(rpm):
                if ri < len(rd):
                    a(rd[ri])
                    ri += 1
        while ri < len(rd):
            a(rd[ri])
            ri += 1


def gen_k2(a):
    sJ, sI, sRB, sRole, sW = 3, 4, 5, 6, 7
    sT0, sT1, sT2, sK, sM0 = 8, 9, 10, 11, 12
    SRD_A, SRD_B, SRD_WS = 52, 56, 60
    a.label("k2_kernel")
    a("s_cmp_ge_u32 s2, 256")
    a("s_cbranch_scc1 k2_end")
    load_kernargs(a)
    va = Alloc(1, 256, 'v')
    vL = va()
    t = [va() for _ in range(6)]
    a(f"v_lshrrev_b32 {v(t[0])}, 6, v0")
    a(f"v_and_b32 {v(vL)}, 63, v0")
    a(f"v_readfirstlane_b32 {s(sW)}, {v(t[0])}")
    a(f"s_and_b32 {s(sJ)}, s2, 7")
    a(f"s_lshr_b32 {s(sI)}, s2, 3")
    a(f"s_lshr_b32 {s(sRB)}, {s(sI)}, 4")
    a(f"s_lshl_b32 {s(sT0)}, {s(sJ)}, 1")
    a(f"s_add_u32 {s(sRB)}, {s(sRB)}, {s(sT0)}")
    a(f"s_and_b32 {s(sRole)}, {s(sI)}, 15")
    a(f"s_cmp_eq_u32 {s(sRole)}, 15")
    a("s_cbranch_scc1 k2_gate")
    a(f"s_cmp_lt_u32 {s(sW)}, 4")
    a("s_cbranch_scc1 k2_cons")
    mark = va.mark()
    sLW = sW
    a(f"s_sub_u32 {s(sLW)}, {s(sW)}, 4")
    vChunk, vLin = va(), va()
    vR = [va() for _ in range(4)]
    a(f"v_and_b32 {v(t[0])}, 7, {v(vL)}")
    a(f"v_lshrrev_b32 {v(t[1])}, 4, {v(vL)}")
    a(f"v_xor_b32 {v(vChunk)}, {v(t[0])}, {v(t[1])}")
    a(f"v_lshlrev_b32 {v(vChunk)}, 4, {v(vChunk)}")
    a(f"v_lshrrev_b32 {v(t[0])}, 3, {v(vL)}")
    a(f"s_lshl_b32 {s(sT0)}, {s(sLW)}, 5")
    a(f"v_add_u32 {v(t[0])}, {s(sT0)}, {v(t[0])}")
    a(f"s_cmp_ge_u32 {s(sRole)}, 11")
    a("s_cbranch_scc1 k2_yload")
    G_STAGE, G_R = 24576, 6
    a(f"s_lshl_b32 {s(sT0)}, {s(sRB)}, 7")
    a(f"v_add_u32 {v(t[0])}, {s(sT0)}, {v(t[0])}")
    a(f"v_lshl_add_u32 {v(vR[0])}, {v(t[0])}, 12, {v(vChunk)}")
    a(f"v_xor_b32 {v(vR[1])}, 64, {v(vR[0])}")
    a(f"v_add_u32 {v(vR[2])}, {16*4096-2048}, {v(vR[0])}")
    a(f"v_add_u32 {v(vR[3])}, {24*4096-3072}, {v(vR[1])}")
    a(f"v_add_u32 {v(vR[1])}, {8*4096-1024}, {v(vR[1])}")
    a(f"s_lshl_b32 {s(sT0)}, {s(sRole)}, 18")
    a(f"s_lshl_b32 {s(sT1)}, {s(sLW)}, 11")
    a(f"s_add_u32 {s(sT0)}, {s(sT0)}, {s(sT1)}")
    a(f"s_add_u32 {s(sT0)}, {s(sT0)}, {hx(Z2N_OFF)}")
    a(f"v_lshl_add_u32 {v(vLin)}, {v(vL)}, 4, {s(sT0)}")
    a(f"s_lshl_b32 {s(sM0)}, {s(sLW)}, 12")
    a("s_waitcnt lgkmcnt(0)")
    make_srd(a, SRD_A, P_WSP, 2048 * 4096)
    make_srd(a, SRD_WS, P_WS, WS_SIZE)

    def g_issue(st):
        slot = (st % G_R) * G_STAGE
        a(f"s_add_u32 m0, {s(sT1)}, {slot}")
        a(f"s_mov_b32 {s(sK)}, {st*8192}")
        a(f"buffer_load_dwordx4 {v(vLin)}, s[{SRD_WS}:{SRD_WS+3}], {s(sK)} offen lds")
        a(f"buffer_load_dwordx4 {v(vLin)}, s[{SRD_WS}:{SRD_WS+3}], {s(sK)} offen offset:1024 lds")
        a(f"s_add_u32 m0, {s(sM0)}, {slot+8192}")
        a(f"s_mov_b32 {s(sK)}, {st*128}")
        for i in range(4):
            a(f"buffer_load_dwordx4 {v(vR[i])}, s[{SRD_A}:{SRD_A+3}], {s(sK)} offen offset:{i*1024} lds")
    ring_loader(a, 32, G_R, 6, g_issue)
    a.label("k2_yload")
    Y_STAGE, Y_R = 32768, 5
    sDC = sRole
    a(f"s_sub_u32 {s(sDC)}, {s(sRole)}, 11")
    a(f"s_lshl_b32 {s(sT0)}, {s(sDC)}, 7")
    a(f"v_add_u32 {v(t[0])}, {s(sT0)}, {v(t[0])}")
    a(f"v_lshl_add_u32 {v(vR[0])}, {v(t[0])}, 10, {v(vChunk)}")
    a(f"v_xor_b32 {v(vR[1])}, 64, {v(vR[0])}")
    a(f"v_add_u32 {v(vR[2])}, {16*1024-2048}, {v(vR[0])}")
    a(f"v_add_u32 {v(vR[3])}, {24*1024-3072}, {v(vR[1])}")
    a(f"v_add_u32 {v(vR[1])}, {8*1024-1024}, {v(vR[1])}")
    a(f"s_lshl_b32 {s(sM0)}, {s(sLW)}, 12")
    a(f"s_lshl_b32 {s(sT0)}, {s(sRB)}, 18")
    a(f"s_add_u32 {s(sT0)}, {s(sT0)}, {s(sM0)}")
    a(f"s_add_u32 {s(sT0)}, {s(sT0)}, {hx(H_OFF)}")
    a(f"v_lshl_add_u32 {v(vLin)}, {v(vL)}, 4, {s(sT0)}")
    a("s_waitcnt lgkmcnt(0)")
    make_srd(a, SRD_A, P_CRE, 512 * 1024)
    make_srd(a, SRD_B, P_CIM, 512 * 1024)
    make_srd(a, SRD_WS, P_WS, WS_SIZE)

    def y_issue(st):
        slot = (st % Y_R) * Y_STAGE
        srd = SRD_B if st & 1 else SRD_A
        a(f"s_add_u32 m0, {s(sM0)}, {slot}")
        a(f"s_mov_b32 {s(sK)}, {(st>>1)*128}")
        for i in range(4):
            a(f"buffer_load_dwordx4 {v(vR[i])}, s[{srd}:{srd+3}], {s(sK)} offen offset:{i*1024} lds")
        a(f"s_add_u32 m0, {s(sM0)}, {slot+16384}")
        a(f"s_mov_b32 {s(sK)}, {st*16384}")
        for i in range(4):
            a(f"buffer_load_dwordx4 {v(vLin)}, s[{SRD_WS}:{SRD_WS+3}], {s(sK)} offen offset:{i*1024} lds")
    ring_loader(a, 16, Y_R, 8, y_issue)

    va.release(mark)
    a.label("k2_cons")
    vn5, vh = va(), va()
    a(f"v_and_b32 {v(vn5)}, 31, {v(vL)}")
    a(f"v_lshrrev_b32 {v(vh)}, 5, {v(vL)}")
    vP = va()
    a(f"v_bfe_u32 {v(t[0])}, {v(vL)}, 1, 3")
    a(f"v_xor_b32 {v(t[0])}, {v(t[0])}, {v(vh)}")
    a(f"v_lshlrev_b32 {v(t[0])}, 4, {v(t[0])}")
    a(f"v_lshl_add_u32 {v(vP)}, {v(vn5)}, 7, {v(t[0])}")
    sLo, sHi = 13, 14
    a(f"s_and_b32 {s(sLo)}, {s(sW)}, 1")
    a(f"s_lshr_b32 {s(sHi)}, {s(sW)}, 1")
    a(f"s_cmp_ge_u32 {s(sRole)}, 11")
    a("s_cbranch_scc1 k2_ycons")
    mark2 = va.mark()
    pa, pb = [], []
    a(f"s_lshl_b32 {s(sT0)}, {s(sLo)}, 12")
    a(f"s_lshl_b32 {s(sT1)}, {s(sHi)}, 13")
    for ss in range(4):
        x, y = va(), va()
        a(f"v_xor_b32 {v(t[0])}, {32*ss}, {v(vP)}")
        a(f"v_add_u32 {v(x)}, {s(sT0)}, {v(t[0])}")
        a(f"v_add_u32 {v(y)}, {s(sT1)}, {v(t[0])}")
        pa.append(LdsAddr(a, va, x, G_R * G_STAGE - 1))
        pb.append(LdsAddr(a, va, y, G_R * G_STAGE - 1))
    z1 = [[va(4, 4) for c in range(2)] for tt in range(2)]
    bs = [va(), va()]
    vZ, vPo = va(), va()
    a(f"s_lshl_b32 {s(sT0)}, {s(sRB)}, 7")
    a(f"s_lshl_b32 {s(sT1)}, {s(sHi)}, 6")
    a(f"s_add_u32 {s(sT0)}, {s(sT0)}, {s(sT1)}")
    a(f"v_add_u32 {v(t[0])}, {s(sT0)}, {v(vn5)}")
    a(f"v_mul_u32_u24 {v(vZ)}, {Z1_STRIDE}, {v(t[0])}")
    a(f"v_lshl_add_u32 {v(vZ)}, {v(vh)}, 4, {v(vZ)}")
    a(f"v_lshlrev_b32 {v(t[0])}, 1, {v(t[0])}")
    a(f"s_lshl_b32 {s(sT0)}, {s(sRole)}, 7")
    a(f"s_lshl_b32 {s(sT1)}, {s(sLo)}, 6")
    a(f"s_add_u32 {s(sT0)}, {s(sT0)}, {s(sT1)}")
    a(f"s_add_u32 {s(sT1)}, {s(sT0)}, {32*Z1_STRIDE}")
    a("s_waitcnt lgkmcnt(0)")
    make_srd(a, SRD_WS, P_WS, WS_SIZE)
    for tt in range(2):
        for c in range(2):
            a(f"buffer_load_dwordx4 {v(z1[tt][c],4)}, {v(vZ)}, s[{SRD_WS}:{SRD_WS+3}], {s(sT1 if tt else sT0)} offen offset:{Z1_OFF + c*32}")
        a(f"global_load_ushort {v(bs[tt])}, {v(t[0])}, s[{P_BSP}:{P_BSP+1}] offset:{tt*64}")
    fA = [[va(4, 4) for ss in range(4)] for b in range(2)]
    fB = [[[va(4, 4) for tt in range(2)] for ss in range(4)] for b in range(2)]
    acc = [va(16, 4) for tt in range(2)]

    def g_reads(k):
        slot = (k % G_R) * G_STAGE
        out = []
        for ss in range(4):
            out.append(f"ds_read_b128 {v(fA[k&1][ss],4)}, {pa[ss].at(slot)}")
            for tt in range(2):
                out.append(f"ds_read_b128 {v(fB[k&1][ss][tt],4)}, {pb[ss].at(slot+8192+tt*4096)}")
        return out

    def g_mfmas(k):
        out = []
        for ss in range(4):
            for tt in range(2):
                c = "0" if (k == 0 and ss == 0) else v(acc[tt], 16)
                out.append(f"v_mfma_f32_32x32x16_bf16 {v(acc[tt],16)}, {v(fA[k&1][ss],4)}, {v(fB[k&1][ss][tt],4)}, {c}")
        return out
    ring_consumer(a, 32, g_reads, g_mfmas, 2)
    a(f"s_lshl_b32 {s(sT0)}, {s(sRB)}, 1")
    a(f"s_add_u32 {s(sT0)}, {s(sT0)}, {s(sHi)}")
    a(f"s_mul_i32 {s(sT0)}, {s(sT0)}, 11")
    a(f"s_add_u32 {s(sT0)}, {s(sT0)}, {s(sRole)}")
    a(f"s_lshl_b32 {s(sT0)}, {s(sT0)}, 13")
    a(f"s_add_u32 {s(sT0)}, {s(sT0)}, {hx(P_OFF)}")
    a(f"s_add_u32 {s(sT1)}, {s(sT0)}, 4096")
    a(f"s_lshl_b32 {s(sT2)}, {s(sLo)}, 6")
    a(f"v_xor_b32 {v(vPo)}, {s(sT2)}, {v(vP)}")
    a(f"v_xor_b32 {v(vZ)}, 32, {v(vPo)}")
    a("s_waitcnt vmcnt(0)")
    a(f"v_lshlrev_b32 {v(bs[0])}, 16, {v(bs[0])}")
    a(f"v_lshlrev_b32 {v(bs[1])}, 16, {v(bs[1])}")
    a("s_nop 7")
    for tt in range(2):
        for c in range(2):
            o = fA[0][2*tt+c]
            for i in range(4):
                r = acc[tt] + 8*c + 2*i
                zz = z1[tt][c] + i
                a(f"v_add_f32 {v(r)}, {v(r)}, {v(bs[tt])}")
                a(f"v_add_f32 {v(r+1)}, {v(r+1)}, {v(bs[tt])}")
                a(f"v_lshlrev_b32 {v(t[0])}, 16, {v(zz)}")
                a(f"v_and_b32 {v(t[1])}, 0xffff0000, {v(zz)}")
                a(f"v_mul_f32 {v(r)}, {v(r)}, {v(t[0])}")
                a(f"v_mul_f32 {v(r+1)}, {v(r+1)}, {v(t[1])}")
                a(f"v_cvt_pk_bf16_f32 {v(o+i)}, {v(r)}, {v(r+1)}")
            a(f"buffer_store_dwordx4 {v(o,4)}, {v(vZ if c else vPo)}, s[{SRD_WS}:{SRD_WS+3}], {s(sT1 if tt else sT0)} offen")
    a("s_endpgm")
    hi1 = va.hi
    va.release(mark2)
    a.label("k2_ycons")
    a(f"s_sub_u32 {s(sDC)}, {s(sRole)}, 11")
    pa, pb = [], []
    a(f"s_lshl_b32 {s(sT0)}, {s(sLo)}, 13")
    for ss in range(4):
        x = va()
        a(f"v_xor_b32 {v(t[0])}, {32*ss}, {v(vP)}")
        a(f"v_add_u32 {v(x)}, {s(sT0)}, {v(t[0])}")
        pa.append(LdsAddr(a, va, x, Y_R * Y_STAGE - 1))
    a(f"v_bfe_u32 {v(t[0])}, {v(vL)}, 2, 2")
    a(f"v_lshl_add_u32 {v(t[1])}, {v(vh)}, 3, {v(t[0])}")
    a(f"v_lshlrev_b32 {v(t[1])}, 8, {v(t[1])}")
    a(f"s_lshl_b32 {s(sT0)}, {s(sHi)}, 1")
    a(f"v_xor_b32 {v(t[0])}, {s(sT0)}, {v(t[0])}")
    a(f"v_lshl_add_u32 {v(t[1])}, {v(t[0])}, 6, {v(t[1])}")
    a(f"v_bfe_u32 {v(t[0])}, {v(vL)}, 4, 1")
    a(f"v_lshl_add_u32 {v(t[1])}, {v(t[0])}, 5, {v(t[1])}")
    a(f"v_and_b32 {v(t[0])}, 3, {v(vL)}")
    y0, y1 = va(), va()
    a(f"v_lshl_add_u32 {v(y0)}, {v(t[0])}, 3, {v(t[1])}")
    a(f"v_xor_b32 {v(y1)}, 64, {v(y0)}")
    pb = [LdsAddr(a, va, y, Y_R * Y_STAGE - 1) for y in (y0, y1)]
    fA = [[[va(4, 4) for dd in range(2)] for ss in range(4)] for b in range(2)]
    fB = [[[va(4, 4) for tt in range(2)] for ss in range(4)] for b in range(2)]
    acc = [[va(16, 4) for dd in range(2)] for tt in range(2)]
    a("s_waitcnt lgkmcnt(0)")
    make_srd(a, SRD_WS, P_WS, WS_SIZE)
    make_srd(a, SRD_A, P_X, 2048 * 1024)

    def y_reads(k):
        slot = (k % Y_R) * Y_STAGE
        out = []
        for ss in range(4):
            for i in range(2):
                out.append(f"ds_read_b128 {v(fA[k&1][ss][i],4)}, {pa[ss].at(slot+i*4096)}")
                b = slot + 16384 + ss * 4096
                out.append(f"ds_read_b64_tr_b16 {v(fB[k&1][ss][i],2)}, {pb[i].at(b)}")
                out.append(f"ds_read_b64_tr_b16 {v(fB[k&1][ss][i]+2,2)}, {pb[i].at(b+1024)}")
        return out

    def y_mfmas(k):
        out = []
        for ss in range(4):
            for tt in range(2):
                for dd in range(2):
                    c = "0" if (k == 0 and ss == 0) else v(acc[tt][dd], 16)
                    out.append(f"v_mfma_f32_32x32x16_bf16 {v(acc[tt][dd],16)}, {v(fA[k&1][ss][dd],4)}, {v(fB[k&1][ss][tt],4)}, {c}")
        return out
    ring_consumer(a, 16, y_reads, y_mfmas, 2)
    xs = fA[0][0][0]
    dk = fB[0][0][0]
    assert fA[0][3][1] == xs + 28
    a(f"s_lshl_b32 {s(sT0)}, {s(sDC)}, 8")
    a(f"s_lshl_b32 {s(sT1)}, {s(sLo)}, 7")
    a(f"s_add_u32 {s(sT0)}, {s(sT0)}, {s(sT1)}")
    a(f"v_lshl_add_u32 {v(t[2])}, {v(vh)}, 3, {s(sT0)}")
    a(f"s_lshl_b32 {s(sT0)}, {s(sRB)}, 7")
    a(f"s_lshl_b32 {s(sT1)}, {s(sHi)}, 6")
    a(f"s_add_u32 {s(sT0)}, {s(sT0)}, {s(sT1)}")
    a(f"v_add_u32 {v(t[0])}, {s(sT0)}, {v(vn5)}")
    a(f"v_lshl_add_u32 {v(t[3])}, {v(t[0])}, 10, {v(t[2])}")
    a(f"s_mov_b32 {s(sT0)}, 32768")
    for dd in range(2):
        for j in range(4):
            a(f"global_load_dwordx2 {v(dk+2*(4*dd+j),2)}, {v(t[2])}, s[{P_DSK}:{P_DSK+1}] offset:{dd*64+j*16}")
    for tt in range(2):
        for dd in range(2):
            for j in range(4):
                a(f"buffer_load_dwordx2 {v(xs+2*(8*tt+4*dd+j),2)}, {v(t[3])}, s[{SRD_A}:{SRD_A+3}], {s(sT0) if tt else '0'} offen offset:{dd*64+j*16}")
    a(f"s_lshl_b32 {s(sT0)}, {s(sRB)}, 1")
    a(f"s_add_u32 {s(sT0)}, {s(sT0)}, {s(sHi)}")
    a(f"s_lshl_b32 {s(sT0)}, {s(sT0)}, 17")
    a(f"s_lshl_b32 {s(sT1)}, {s(sDC)}, 1")
    a(f"s_add_u32 {s(sT1)}, {s(sT1)}, {s(sLo)}")
    a(f"s_lshl_b32 {s(sT1)}, {s(sT1)}, 13")
    a(f"s_add_u32 {s(sT0)}, {s(sT0)}, {s(sT1)}")
    a(f"s_add_u32 {s(sT0)}, {s(sT0)}, {hx(A_OFF)}")
    a(f"v_lshlrev_b32 {v(t[4])}, 4, {v(vL)}")
    du = fB[0][2][0]
    du = fA[1][0][0]
    a("s_waitcnt vmcnt(16)")
    a("s_nop 4")
    for i in range(16):
        a(f"v_lshlrev_b32 {v(du+2*i)}, 16, {v(dk+i)}")
        a(f"v_and_b32 {v(du+2*i+1)}, 0xffff0000, {v(dk+i)}")
    a("s_waitcnt vmcnt(0)")
    for tt in range(2):
        for dd in range(2):
            a(f"s_add_u32 {s(sT1)}, {s(sT0)}, {tt*65536 + dd*4096}")
            for j in range(4):
                r = acc[tt][dd] + 4*j
                x = xs + 2*(8*tt+4*dd+j)
                d = du + 4*(4*dd+j)
                a(f"v_lshlrev_b32 {v(t[0])}, 16, {v(x)}")
                a(f"v_and_b32 {v(t[1])}, 0xffff0000, {v(x)}")
                a(f"v_lshlrev_b32 {v(t[2])}, 16, {v(x+1)}")
                a(f"v_and_b32 {v(t[3])}, 0xffff0000, {v(x+1)}")
                for e in range(4):
                    a(f"v_fmac_f32 {v(r+e)}, {v(t[e])}, {v(d+e)}")
                a(f"buffer_store_dwordx4 {v(r,4)}, {v(t[4])}, s[{SRD_WS}:{SRD_WS+3}], {s(sT1)} offen offset:{j*1024}")
    a("s_endpgm")
    hi2 = va.hi
    va.release(mark)
    a.label("k2_gate")
    xr = [va(4, 4) for _ in range(16)]
    gw = va(4, 4)
    gu = va(8)
    sm = [va() for _ in range(16)]
    a(f"s_lshl_b32 {s(sT0)}, {s(sRB)}, 7")
    a(f"s_lshl_b32 {s(sT1)}, {s(sW)}, 4")
    a(f"s_add_u32 {s(sT0)}, {s(sT0)}, {s(sT1)}")
    a(f"s_lshl_b32 {s(sT1)}, {s(sT0)}, 10")
    a(f"v_lshlrev_b32 {v(t[0])}, 4, {v(vL)}")
    a(f"v_add_u32 {v(t[1])}, {s(sT1)}, {v(t[0])}")
    a("s_waitcnt lgkmcnt(0)")
    make_srd(a, SRD_A, P_X, 2048 * 1024)
    make_srd(a, SRD_WS, P_WS, WS_SIZE)
    a(f"global_load_dwordx4 {v(gw,4)}, {v(t[0])}, s[{P_GW}:{P_GW+1}]")
    for i in range(16):
        if i % 4 == 0:
            a(f"s_mov_b32 {s(sK)}, {i*1024}")
        a(f"buffer_load_dwordx4 {v(xr[i],4)}, {v(t[1])}, s[{SRD_A}:{SRD_A+3}], {s(sK)} offen offset:{(i%4)*1024}")
    a("s_waitcnt vmcnt(16)")
    for i in range(4):
        a(f"v_lshlrev_b32 {v(gu+2*i)}, 16, {v(gw+i)}")
        a(f"v_and_b32 {v(gu+2*i+1)}, 0xffff0000, {v(gw+i)}")
    for i in range(16):
        a(f"s_waitcnt vmcnt({15-i})")
        for e in range(4):
            a(f"v_lshlrev_b32 {v(t[2])}, 16, {v(xr[i]+e)}")
            a(f"v_and_b32 {v(t[3])}, 0xffff0000, {v(xr[i]+e)}")
            a(f"v_mul_f32 {v(t[2])}, {v(t[2])}, {v(gu+2*e)}")
            a(f"v_mul_f32 {v(t[3])}, {v(t[3])}, {v(gu+2*e+1)}")
            a(f"v_cvt_pk_bf16_f32 {v(t[2])}, {v(t[2])}, {v(t[3])}")
            a(f"v_and_b32 {v(t[3])}, 0xffff0000, {v(t[2])}")
            a(f"v_lshlrev_b32 {v(t[2])}, 16, {v(t[2])}")
            if e == 0:
                a(f"v_add_f32 {v(sm[i])}, {v(t[2])}, {v(t[3])}")
            else:
                a(f"v_add_f32 {v(sm[i])}, {v(sm[i])}, {v(t[2])}")
                a(f"v_add_f32 {v(sm[i])}, {v(sm[i])}, {v(t[3])}")
    for sh in (8, 4, 2, 1):
        for i in range(16):
            a(f"v_add_f32_dpp {v(sm[i])}, {v(sm[i])}, {v(sm[i])} row_ror:{sh} row_mask:0xf bank_mask:0xf")
    for sw in ("v_permlane16_swap_b32", "v_permlane32_swap_b32"):
        for i in range(16):
            a(f"v_mov_b32 {v(xr[0]+i)}, {v(sm[i])}")
        a("s_nop 0")
        for i in range(16):
            a(f"{sw} {v(sm[i])}, {v(xr[0]+i)}")
        for i in range(16):
            a(f"v_add_f32 {v(sm[i])}, {v(sm[i])}, {v(xr[0]+i)}")
    a(f"v_mov_b32 {v(t[2])}, {v(sm[0])}")
    for i in range(1, 16):
        a(f"v_cmp_eq_u32 vcc, {i}, {v(vL)}")
        a("s_nop 1")
        a(f"v_cndmask_b32 {v(t[2])}, {v(t[2])}, {v(sm[i])}, vcc")
    g2 = gw
    a(f"v_cvt_pk_bf16_f32 {v(t[2])}, {v(t[2])}, {v(t[2])}")
    a(f"v_lshlrev_b32 {v(t[2])}, 16, {v(t[2])}")
    a(f"v_mul_f32 {v(t[2])}, {hx(f2u(-LOG2E))}, {v(t[2])}")
    a(f"v_exp_f32 {v(t[2])}, {v(t[2])}")
    a("s_nop 0")
    a(f"v_add_f32 {v(t[2])}, 1.0, {v(t[2])}")
    a(f"v_rcp_f32 {v(t[2])}, {v(t[2])}")
    a("s_nop 0")
    a(f"v_cvt_pk_bf16_f32 {v(t[2])}, {v(t[2])}, {v(t[2])}")
    a(f"v_lshlrev_b32 {v(g2)}, 16, {v(t[2])}")
    a(f"v_sub_f32 {v(t[2])}, 1.0, {v(g2)}")
    a(f"v_cvt_pk_bf16_f32 {v(t[2])}, {v(t[2])}, {v(t[2])}")
    a(f"v_lshlrev_b32 {v(g2+1)}, 16, {v(t[2])}")
    a(f"s_lshl_b32 {s(sT0)}, {s(sT0)}, 3")
    a(f"s_add_u32 {s(sT0)}, {s(sT0)}, {hx(G_OFF)}")
    a(f"v_lshlrev_b32 {v(t[0])}, 3, {v(vL)}")
    a(f"v_cmp_gt_u32 vcc, 16, {v(vL)}")
    a("s_and_saveexec_b64 s[14:15], vcc")
    a(f"buffer_store_dwordx2 {v(g2,2)}, {v(t[0])}, s[{SRD_WS}:{SRD_WS+3}], {s(sT0)} offen")
    a.label("k2_end")
    a("s_endpgm")
    return max(hi1, hi2, va.hi)


def gen_k3(a):
    sJ, sI, sTT, sDT, sW = 3, 4, 5, 6, 7
    sT0, sT1, sT2, sK, sM0 = 8, 9, 10, 11, 12
    SRD_A, SRD_O, SRD_WS = 52, 56, 60
    STAGE, R = 16384, 10
    a.label("k3_kernel")
    a("s_cmp_ge_u32 s2, 256")
    a("s_cbranch_scc1 k3_end")
    load_kernargs(a)
    va = Alloc(1, 256, 'v')
    vL = va()
    t = [va() for _ in range(6)]
    a(f"v_lshrrev_b32 {v(t[0])}, 6, v0")
    a(f"v_and_b32 {v(vL)}, 63, v0")
    a(f"v_readfirstlane_b32 {s(sW)}, {v(t[0])}")
    a(f"s_and_b32 {s(sJ)}, s2, 7")
    a(f"s_lshr_b32 {s(sI)}, s2, 3")
    a(f"s_lshr_b32 {s(sTT)}, {s(sI)}, 3")
    a(f"s_lshl_b32 {s(sT0)}, {s(sJ)}, 2")
    a(f"s_add_u32 {s(sTT)}, {s(sTT)}, {s(sT0)}")
    a(f"s_and_b32 {s(sDT)}, {s(sI)}, 7")
    a(f"s_cmp_lt_u32 {s(sW)}, 4")
    a("s_cbranch_scc1 k3_cons")
    mark = va.mark()
    sLW = sW
    a(f"s_sub_u32 {s(sLW)}, {s(sW)}, 4")
    vW0, vW1, vLin = va(), va(), va()
    a(f"v_and_b32 {v(t[0])}, 7, {v(vL)}")
    a(f"v_bfe_u32 {v(t[1])}, {v(vL)}, 4, 1")
    a(f"v_lshlrev_b32 {v(t[1])}, 2, {v(t[1])}")
    a(f"v_xor_b32 {v(t[0])}, {v(t[0])}, {v(t[1])}")
    a(f"v_lshlrev_b32 {v(t[0])}, 4, {v(t[0])}")
    a(f"v_lshrrev_b32 {v(t[1])}, 3, {v(vL)}")
    a(f"v_lshl_add_u32 {v(t[0])}, {v(t[1])}, 10, {v(t[0])}")
    a(f"s_lshl_b32 {s(sT0)}, {s(sLW)}, 14")
    a(f"s_lshl_b32 {s(sT1)}, {s(sDT)}, 7")
    a(f"s_add_u32 {s(sT0)}, {s(sT0)}, {s(sT1)}")
    a(f"v_add_u32 {v(vW0)}, {s(sT0)}, {v(t[0])}")
    a(f"v_add_u32 {v(vW1)}, {8*1024-1024}, {v(vW0)}")
    a(f"s_lshl_b32 {s(sM0)}, {s(sLW)}, 11")
    a(f"s_mul_i32 {s(sT0)}, {s(sTT)}, {11*8192}")
    a(f"s_add_u32 {s(sT0)}, {s(sT0)}, {s(sM0)}")
    a(f"s_add_u32 {s(sT0)}, {s(sT0)}, {hx(P_OFF)}")
    a(f"v_lshl_add_u32 {v(vLin)}, {v(vL)}, 4, {s(sT0)}")
    a("s_waitcnt lgkmcnt(0)")
    make_srd(a, SRD_A, P_WOUT, 688 * 1024)
    make_srd(a, SRD_WS, P_WS, WS_SIZE)

    def issue(st):
        slot = (st % R) * STAGE
        a(f"s_add_u32 m0, {s(sM0)}, {slot+8192}")
        a(f"s_mov_b32 {s(sK)}, {st*8192}")
        a(f"buffer_load_dwordx4 {v(vLin)}, s[{SRD_WS}:{SRD_WS+3}], {s(sK)} offen lds")
        a(f"buffer_load_dwordx4 {v(vLin)}, s[{SRD_WS}:{SRD_WS+3}], {s(sK)} offen offset:1024 lds")
        a(f"s_add_u32 m0, {s(sM0)}, {slot}")
        a(f"s_mov_b32 {s(sK)}, {st*65536}")
        a(f"buffer_load_dwordx4 {v(vW0)}, s[{SRD_A}:{SRD_A+3}], {s(sK)} offen lds")
        a(f"buffer_load_dwordx4 {v(vW1)}, s[{SRD_A}:{SRD_A+3}], {s(sK)} offen offset:1024 lds")
    ring_loader(a, 11, R, 4, issue)
    va.release(mark)
    a.label("k3_cons")
    sLo, sHi = 13, 14
    a(f"s_and_b32 {s(sLo)}, {s(sW)}, 1")
    a(f"s_lshr_b32 {s(sHi)}, {s(sW)}, 1")
    vn5, vh = va(), va()
    a(f"v_and_b32 {v(vn5)}, 31, {v(vL)}")
    a(f"v_lshrrev_b32 {v(vh)}, 5, {v(vL)}")
    av = va(16, 4)
    g2 = va(2)
    vO = va()
    a(f"s_lshl_b32 {s(sT0)}, {s(sTT)}, 1")
    a(f"s_add_u32 {s(sT0)}, {s(sT0)}, {s(sHi)}")
    a(f"s_lshl_b32 {s(sT2)}, {s(sT0)}, 5")
    a(f"v_add_u32 {v(t[2])}, {s(sT2)}, {v(vn5)}")
    a(f"s_lshl_b32 {s(sT0)}, {s(sT0)}, 16")
    a(f"s_lshl_b32 {s(sT1)}, {s(sDT)}, 1")
    a(f"s_add_u32 {s(sT1)}, {s(sT1)}, {s(sLo)}")
    a(f"s_lshl_b32 {s(sT2)}, {s(sT1)}, 12")
    a(f"s_add_u32 {s(sT0)}, {s(sT0)}, {s(sT2)}")
    a(f"s_add_u32 {s(sT0)}, {s(sT0)}, {hx(A_OFF)}")
    a(f"v_lshlrev_b32 {v(t[0])}, 4, {v(vL)}")
    a(f"v_lshlrev_b32 {v(t[1])}, 3, {v(t[2])}")
    a(f"s_lshl_b32 {s(sT1)}, {s(sT1)}, 7")
    a(f"v_lshl_add_u32 {v(vO)}, {v(vh)}, 4, {s(sT1)}")
    a(f"v_lshl_add_u32 {v(vO)}, {v(t[2])}, 11, {v(vO)}")
    a(f"s_mov_b32 {s(sT2)}, {hx(G_OFF)}")
    a("s_waitcnt lgkmcnt(0)")
    make_srd(a, SRD_WS, P_WS, WS_SIZE)
    make_srd(a, SRD_O, P_OUT, 2048 * 2048)
    for j in range(4):
        a(f"buffer_load_dwordx4 {v(av+4*j,4)}, {v(t[0])}, s[{SRD_WS}:{SRD_WS+3}], {s(sT0)} offen offset:{j*1024}")
    a(f"buffer_load_dwordx2 {v(g2,2)}, {v(t[1])}, s[{SRD_WS}:{SRD_WS+3}], {s(sT2)} offen")
    x = va()
    a(f"v_bfe_u32 {v(t[0])}, {v(vL)}, 2, 2")
    a(f"v_lshl_add_u32 {v(t[1])}, {v(vh)}, 3, {v(t[0])}")
    a(f"v_lshlrev_b32 {v(t[1])}, 7, {v(t[1])}")
    a(f"v_lshrrev_b32 {v(t[0])}, 1, {v(t[0])}")
    a(f"v_xor_b32 {v(t[0])}, {s(sLo)}, {v(t[0])}")
    a(f"v_lshl_add_u32 {v(t[1])}, {v(t[0])}, 6, {v(t[1])}")
    a(f"v_bfe_u32 {v(t[0])}, {v(vL)}, 4, 1")
    a(f"v_lshl_add_u32 {v(t[1])}, {v(t[0])}, 5, {v(t[1])}")
    a(f"v_and_b32 {v(t[0])}, 3, {v(vL)}")
    a(f"v_lshl_add_u32 {v(x)}, {v(t[0])}, 3, {v(t[1])}")
    pa = LdsAddr(a, va, x, R * STAGE - 1)
    vP = va()
    a(f"v_bfe_u32 {v(t[0])}, {v(vL)}, 1, 3")
    a(f"v_xor_b32 {v(t[0])}, {v(t[0])}, {v(vh)}")
    a(f"v_lshlrev_b32 {v(t[0])}, 4, {v(t[0])}")
    a(f"v_lshl_add_u32 {v(vP)}, {v(vn5)}, 7, {v(t[0])}")
    a(f"s_lshl_b32 {s(sT1)}, {s(sHi)}, 12")
    pb = []
    for ss in range(4):
        y = va()
        a(f"v_xor_b32 {v(t[0])}, {32*ss}, {v(vP)}")
        a(f"v_add_u32 {v(y)}, {s(sT1)}, {v(t[0])}")
        pb.append(LdsAddr(a, va, y, R * STAGE - 1))
    fA = [[va(4, 4) for ss in range(4)] for b in range(2)]
    fB = [[va(4, 4) for ss in range(4)] for b in range(2)]
    acc = va(16, 4)

    def reads(k):
        slot = (k % R) * STAGE
        out = []
        for ss in range(4 if k < 10 else 3):
            out.append(f"ds_read_b64_tr_b16 {v(fA[k&1][ss],2)}, {pa.at(slot+ss*2048)}")
            out.append(f"ds_read_b64_tr_b16 {v(fA[k&1][ss]+2,2)}, {pa.at(slot+ss*2048+512)}")
            out.append(f"ds_read_b128 {v(fB[k&1][ss],4)}, {pb[ss].at(slot+8192)}")
        return out

    def mfmas(k):
        out = []
        for ss in range(4 if k < 10 else 3):
            c = "0" if (k == 0 and ss == 0) else v(acc, 16)
            out.append(f"v_mfma_f32_32x32x16_bf16 {v(acc,16)}, {v(fA[k&1][ss],4)}, {v(fB[k&1][ss],4)}, {c}")
        return out
    ring_consumer(a, 11, reads, mfmas, 3)
    a("s_waitcnt vmcnt(0)")
    for i in range(16):
        a(f"v_mul_f32 {v(av+i)}, {v(av+i)}, {v(g2)}")
    for j in range(4):
        for e in range(4):
            a(f"v_fmac_f32 {v(av+4*j+e)}, {v(acc+4*j+e)}, {v(g2+1)}")
        a(f"buffer_store_dwordx4 {v(av+4*j,4)}, {v(vO)}, s[{SRD_O}:{SRD_O+3}], 0 offen offset:{j*32}")
    a.label("k3_end")
    a("s_endpgm")
    return va.hi


HEADER = open("cdna_kernels/" + NAME + ".s.ref").read().split("; Override launch geometry")[0]


def build(extra_launches=""):
    kernels = []
    body = []
    for name, fn, lds in (("k1_kernel", gen_k1, 163840), ("k2_kernel", gen_k2, 163840), ("k3_kernel", gen_k3, 163840)):
        a = Asm()
        a.uid = 1000 * (len(kernels) + 1)
        hi = fn(a)
        e1 = check_hazards(a.lines)
        e2 = check_waits(a.lines)
        print(f"{name}: vgprs {hi}, {len(a.lines)} lines, hazards {len(e1)}, waits {len(e2)}", file=sys.stderr)
        kernels.append((name, hi, lds))
        body.append(f".globl {name}\n.p2align 8\n.type {name},@function\n" + a.text())
    out = HEADER
    for name, hi, lds in kernels:
        out += f"; @launch kernel={name} grid=(256,1,1) block=(512,1,1) lds={lds}\n"
    out += extra_launches
    out += '.amdgcn_target "amdgcn-amd-amdhsa--gfx950"\n.text\n'
    out += "".join(body)
    out += '.section .rodata,"a"\n'
    for name, hi, lds in kernels:
        nv = (hi + 7) // 8 * 8
        out += f""".p2align 6
.amdhsa_kernel {name}
  .amdhsa_next_free_vgpr {nv}
  .amdhsa_next_free_sgpr 96
  .amdhsa_accum_offset {nv}
  .amdhsa_group_segment_fixed_size 0
  .amdhsa_kernarg_size 144
  .amdhsa_user_sgpr_count 2
  .amdhsa_user_sgpr_kernarg_segment_ptr 1
  .amdhsa_system_sgpr_workgroup_id_x 1
.end_amdhsa_kernel
"""
    return out


if __name__ == "__main__":
    dst = sys.argv[1] if len(sys.argv) > 1 else "cdna_kernels/" + NAME + ".s"
    open(dst, "w").write(build())
```

```python
import re


def v(i, n=1):
    return f"v{i}" if n == 1 else f"v[{i}:{i+n-1}]"


def s(i, n=1):
    return f"s{i}" if n == 1 else f"s[{i}:{i+n-1}]"


class Alloc:
    def __init__(self, start, limit, kind):
        self.next = start
        self.limit = limit
        self.kind = kind
        self.hi = start

    def __call__(self, n=1, align=None):
        if align is None:
            align = 1 if n == 1 else (2 if self.kind == 'v' else (4 if n >= 4 else 2))
        b = (self.next + align - 1) // align * align
        self.next = b + n
        assert self.next <= self.limit, f"out of {self.kind} regs"
        self.hi = max(self.hi, self.next)
        return b

    def mark(self):
        return self.next

    def release(self, m):
        self.next = m


class Asm:
    def __init__(self):
        self.lines = []
        self.uid = 0

    def __call__(self, text):
        for ln in text.split("\n"):
            ln = ln.strip()
            if ln:
                self.lines.append(ln)

    def label(self, name):
        self.lines.append(name + ":")

    def newlabel(self, base="L"):
        self.uid += 1
        return f"{base}_{self.uid}"

    def comment(self, t):
        self.lines.append("; " + t)

    def text(self):
        out = []
        for ln in self.lines:
            if ln.endswith(":") or ln.startswith("."):
                out.append(ln)
            else:
                out.append("  " + ln)
        return "\n".join(out) + "\n"


REG_RE = re.compile(r"^(-|abs\()?([vsa])(\d+)\)?$")
RNG_RE = re.compile(r"^(-|abs\()?([vsa])\[(\d+):(\d+)\]\)?$")
TRANS = ("v_exp_f32", "v_log_f32", "v_rcp_f32", "v_rsq_f32", "v_sqrt_f32", "v_sin_f32", "v_cos_f32", "v_rcp_iflag_f32")


def regs_of(tok):
    tok = tok.strip()
    m = REG_RE.match(tok)
    if m:
        return [(m.group(2), int(m.group(3)))]
    m = RNG_RE.match(tok)
    if m:
        return [(m.group(2), i) for i in range(int(m.group(3)), int(m.group(4)) + 1)]
    if tok == "vcc":
        return [("s", "vcc")]
    if tok in ("vcc_lo", "vcc_hi"):
        return [("s", "vcc")]
    if tok == "exec":
        return [("s", "exec")]
    if tok == "m0":
        return [("s", "m0")]
    return []


class Ins:
    def __init__(self, text, idx):
        self.text = text
        self.idx = idx
        t = text.split(";")[0].strip()
        parts = t.split(None, 1)
        self.op = parts[0]
        rest = parts[1] if len(parts) > 1 else ""
        ops = []
        depth = 0
        cur = ""
        for ch in rest:
            if ch in "[(":
                depth += 1
            if ch in "])":
                depth -= 1
            if ch == "," and depth == 0:
                ops.append(cur.strip())
                cur = ""
            else:
                cur += ch
        if cur.strip():
            ops.append(cur.strip())
        self.mods = ""
        if ops:
            last = ops[-1].split(None, 1)
            if len(last) > 1 and not ops[-1].startswith("hwreg") and self.op != "s_waitcnt":
                ops[-1] = last[0]
                self.mods = last[1]
        self.ops = ops
        self.classify()

    def classify(self):
        op = self.op
        o = self.ops
        self.kind = "other"
        self.wr = []
        self.rd = []
        self.states = 1
        self.is_dpp = "_dpp" in op or "row_" in self.mods or "quad_perm" in self.mods
        R = lambda k: regs_of(o[k]) if k < len(o) else []
        allr = lambda a: sum((R(k) for k in range(a, len(o))), [])
        if op == "s_nop":
            self.states = int(o[0], 0) + 1
            self.kind = "nop"
        elif op.startswith("v_mfma"):
            self.kind = "mfma"
            self.wr = R(0)
            self.rdA = R(1) + R(2)
            self.rdC = R(3)
            self.rd = self.rdA + self.rdC
            self.passes = 8 if "32x32" in op else 4
        elif op.startswith("v_cmp"):
            self.kind = "valu"
            self.wr = R(0)
            self.rd = allr(1)
        elif op.startswith("v_readfirstlane") or op.startswith("v_readlane"):
            self.kind = "valu"
            self.wr = R(0)
            self.rd = allr(1)
        elif op.startswith("v_permlane"):
            self.kind = "valu"
            self.wr = R(0) + R(1)
            self.rd = R(0) + R(1)
        elif op.startswith("v_add_co") or op.startswith("v_sub_co") or op.startswith("v_addc_co"):
            self.kind = "valu"
            self.wr = R(0) + R(1)
            self.rd = allr(2)
        elif op.startswith("v_"):
            self.kind = "valu"
            self.wr = R(0)
            self.rd = allr(1)
            if op.startswith("v_fmac") or op.startswith("v_dot2c") or self.is_dpp or op.startswith("v_writelane"):
                self.rd = self.rd + R(0)
        elif op.startswith("buffer_load") or op.startswith("global_load"):
            self.kind = "vmem"
            self.lds = (" lds" in " " + self.mods) or "_lds_" in op
            if self.lds:
                self.rd = allr(0) + [("s", "m0")]
                self.wr = []
            else:
                self.wr = R(0)
                self.rd = allr(1)
        elif op.startswith("buffer_store") or op.startswith("global_store") or op.startswith("buffer_atomic") or op.startswith("global_atomic"):
            self.kind = "vmem"
            self.lds = False
            self.rd = allr(0)
            self.store = True
            if op.startswith("buffer"):
                self.data = R(0)
            else:
                self.data = R(1)
            self.wide = "x4" in op or "x3" in op
            if "atomic" in op and "sc0" in self.mods:
                self.wr = R(0)
        elif op.startswith("buffer_inv") or op.startswith("buffer_wbl2"):
            self.kind = "vmem"
            self.lds = False
        elif op.startswith("ds_read") or "_rtn_" in op or op.startswith("ds_bpermute") or op.startswith("ds_swizzle") or op.startswith("ds_permute"):
            self.kind = "ds"
            self.wr = R(0)
            self.rd = allr(1)
        elif op.startswith("ds_"):
            self.kind = "ds"
            self.rd = allr(0)
        elif op.startswith("s_load") or op.startswith("s_memtime") or op.startswith("s_memrealtime") or op.startswith("s_buffer_load"):
            self.kind = "smem"
            self.wr = R(0)
            self.rd = allr(1)
        elif op in ("s_waitcnt", "s_barrier", "s_endpgm", "s_sleep", "s_setprio") or op.startswith("s_cbranch") or op == "s_branch":
            self.kind = "ctl"
            if op.startswith("s_cbranch_vcc"):
                self.rd = [("s", "vcc")]
        elif op.startswith("s_set_gpr_idx"):
            self.kind = "salu"
            self.rd = R(0)
        elif op.startswith("s_cmp") or op.startswith("s_bitcmp"):
            self.kind = "salu"
            self.rd = allr(0)
        elif op.startswith("s_"):
            self.kind = "salu"
            self.wr = R(0)
            self.rd = allr(1)
            if "saveexec" in op:
                self.wr = self.wr + [("s", "exec")]
            if op.startswith("s_addk") or op.startswith("s_mulk"):
                self.rd = self.rd + R(0)
        else:
            raise ValueError("unknown instr: " + self.text)
        self.is_trans = op.replace("_e32", "").replace("_e64", "") in TRANS
        self.is_store = getattr(self, "store", False)


def required_states(p, c):
    need = 0
    pw = set(p.wr)
    vw = {r for r in pw if r[0] in "va"}
    sw = {r for r in pw if r[0] == "s"}
    crd = set(c.rd)
    cwr = set(c.wr)
    if p.kind == "valu":
        if c.kind == "mfma" and vw & crd:
            need = max(need, 2)
        if c.kind == "valu":
            if p.is_trans and not c.is_trans and vw & crd:
                need = max(need, 1)
            if p.is_trans and c.is_trans and vw & crd:
                need = max(need, 1)
            if (c.op.startswith("v_readfirstlane") or c.op.startswith("v_readlane")) and vw & crd:
                need = max(need, 1)
            if c.is_dpp and vw & crd:
                need = max(need, 2)
            if c.op.startswith("v_permlane") and vw & crd:
                need = max(need, 2)
            if sw & crd:
                need = max(need, 4 if c.op.startswith("v_readlane") or c.op.startswith("v_writelane") else 2)
        if c.kind == "vmem" and sw & crd:
            need = max(need, 5)
    if p.kind == "mfma":
        big = 12 if p.passes == 8 else 8
        if c.kind == "mfma":
            if vw & set(c.rdA):
                need = max(need, big)
            if vw & set(c.rdC):
                if not (c.rdC == p.wr and c.passes == p.passes):
                    need = max(need, big - 2)
            elif vw & cwr:
                need = max(need, big)
        elif c.kind in ("valu", "vmem", "ds") and (vw & crd or vw & cwr):
            need = max(need, big)
        if c.kind == "valu" and set(p.rdC) & cwr:
            need = max(need, 7 if p.passes == 8 else 3)
    if p.kind == "salu" and ("s", "m0") in pw and c.kind == "vmem" and getattr(c, "lds", False):
        need = max(need, 1)
    if p.kind == "vmem" and p.is_store and getattr(p, "wide", False):
        if set(p.data) & cwr:
            need = max(need, 2 if c.kind in ("valu", "mfma") else 1)
    return need


def parse(lines):
    ins = []
    labels = {}
    for ln in lines:
        if ln.startswith(";") or ln.startswith("."):
            continue
        if ln.endswith(":"):
            labels[ln[:-1]] = len(ins)
            continue
        ins.append(Ins(ln, len(ins)))
    return ins, labels


def check_hazards(lines, verbose=True):
    ins, labels = parse(lines)
    n = len(ins)
    preds = [[] for _ in range(n + 1)]
    for i, x in enumerate(ins):
        if x.op == "s_endpgm":
            continue
        if x.op == "s_branch":
            preds[labels[x.ops[0]]].append(i)
            continue
        if x.op.startswith("s_cbranch"):
            preds[labels[x.ops[0]]].append(i)
        preds[i + 1].append(i)
    errs = []
    MAXD = 12
    for ci, c in enumerate(ins):
        if c.kind in ("nop",):
            continue
        stack = [(p, 0) for p in preds[ci]]
        seen = {}
        while stack:
            pi, d = stack.pop()
            if pi in seen and seen[pi] <= d:
                continue
            seen[pi] = d
            p = ins[pi]
            need = required_states(p, c)
            if need > d:
                errs.append(f"HAZARD need {need} have {d}: [{pi}] {p.text}  ->  [{ci}] {c.text}")
            nd = d + p.states
            if nd < MAXD:
                for q in preds[pi]:
                    stack.append((q, nd))
    if verbose:
        for e in errs[:12]:
            print(e)
    return errs


def check_waits(lines, verbose=True):
    ins, labels = parse(lines)
    errs = set()
    start = 0
    stack = [(start, (), ())]
    seen = set()
    visits = {}
    steps = 0
    while stack:
        pc, vm, lg = stack.pop()
        while True:
            if pc >= len(ins):
                break
            key = (pc, vm, lg)
            x = ins[pc]
            if x.kind == "ctl" and (x.op.startswith("s_cbranch") or x.op == "s_branch"):
                if key in seen or visits.get(pc, 0) > 12:
                    break
                seen.add(key)
                visits[pc] = visits.get(pc, 0) + 1
            steps += 1
            if steps > 3000000:
                print("check_waits: step limit")
                return sorted(errs)
            touched = set(x.rd) | set(x.wr)
            for q, name in ((vm, "vm"), (lg, "lgkm")):
                for ent in q:
                    if ent[0] != pc and touched & set(ent[1]):
                        errs.add(f"WAIT({name}) missing: [{pc}] {x.text} touches pending result of [{ent[0]}] {ins[ent[0]].text}")
            if x.op == "s_waitcnt":
                t = x.text
                m = re.search(r"vmcnt\((\d+)\)", t)
                if m:
                    k = int(m.group(1))
                    vm = vm[len(vm) - k:] if k < len(vm) else vm
                    if k == 0:
                        vm = ()
                m = re.search(r"lgkmcnt\((\d+)\)", t)
                if m:
                    k = int(m.group(1))
                    if k == 0:
                        lg = ()
                    else:
                        sm = tuple(e for e in lg if e[2])
                        ld = tuple(e for e in lg if not e[2])
                        if k < len(ld):
                            ld = ld[len(ld) - k:]
                        lg = sm + ld
            elif x.kind == "vmem":
                vm = vm + ((pc, tuple(x.wr), False),)
                vm = vm[-70:]
            elif x.kind == "ds":
                lg = lg + ((pc, tuple(x.wr), False),)
                lg = lg[-40:]
            elif x.kind == "smem":
                lg = lg + ((pc, tuple(x.wr), True),)
            if x.op == "s_endpgm":
                break
            if x.op == "s_branch":
                pc = labels[x.ops[0]]
                continue
            if x.op.startswith("s_cbranch"):
                stack.append((labels[x.ops[0]], vm, lg))
            pc += 1
    errs = sorted(errs)
    if verbose:
        for e in errs[:12]:
            print(e)
    return errs
```

```python
import math
import struct
import sys
from asmlib import Asm, Alloc, v, s, check_hazards, check_waits

NAME = "gated_mix__ssm_conv_s5__mixer_gmlp__prompt"
KNAME = NAME + "_kernel"

Z1_OFF = 0
Z1_STRIDE = 1408
Z2N_OFF = 0x300000
H_OFF = 0x600000
P_OFF = 0xA00000
A_OFF = 0xD00000
G_OFF = 0x1100000
SC_OFF = 0x1110000
LN_OFF = 0x1180000
FZ_OFF = 0x1130000
FH_OFF = 0x1132000
F2_OFF = 0x1134000
TS_OFF = 0x1150000
WS_SIZE = 0x1200000

P_X, P_LRE, P_LIM, P_BRE, P_BIM, P_CRE, P_CIM, P_LDT = 16, 18, 20, 22, 24, 26, 28, 30
P_DSK, P_BX, P_WIN, P_WSP, P_BSP, P_WOUT, P_GW, P_OUT = 32, 34, 36, 38, 40, 42, 44, 46
P_DBG, P_WS = 48, 50
LOG2E = 1.4426950408889634

sW, sRB1, sCol, sIsZ, sRB2, sRole, sDT, sTH3 = 3, 4, 5, 6, 7, 8, 9, 10
sT0, sT1, sT2, sT3, sT4 = 11, 12, 13, 14, 15
SRD_X, SRD_B, SRD_WS, SRD_PA, SRD_PB, SRD_O = 52, 56, 60, 64, 68, 72
sN = 76
sK1, sK2, sMask2 = 78, 79, 80
sE = [None, 81, 82, 83]
sM0, sCnt = 84, 85
S_TS = 86

OPT = dict(stamps=False, ntw="", spin=0x40000, lead=4, rot=True, sleep=6, prof="all", nopre=False, dsc=" sc1", x="", ntx="", q9=16, q0=20, qg=4, rz=1, touch="", ntt=" nt")


def f2u(x):
    return struct.unpack("<I", struct.pack("<f", x))[0]


def hx(x):
    return hex(x & 0xFFFFFFFF)


def srd(r):
    return f"s[{r}:{r+3}]"


def sp(r):
    return f"s[{r}:{r+1}]"


PROF = {
    "all": {0: 0, 1: 1, 2: 2, 3: 3, 4: 4, 5: 5, 6: 6, 7: 7},
    "cnt": {0: 0, 7: 7},
    "clk": {0: 0, 4: 4, 5: 5, 7: 7},
    "clk1": {0: 0, 1: 1, 2: 2, 7: 7},
    "p1": {0: 0, 1: 1, 2: 2, "a": 3, "b": 4, "c": 5, "d": 6, 7: 7},
}


def stamp(a, i):
    if OPT["stamps"]:
        j = PROF[OPT["prof"]].get(i)
        if j is not None:
            a(f"s_memrealtime s[{S_TS+2*j}:{S_TS+2*j+1}]")
        if OPT["prof"] == "clk" and i in (4, 5):
            a(f"s_memtime s[{S_TS+2*(i-3)}:{S_TS+2*(i-3)+1}]")
        if OPT["prof"] == "clk1" and i in (1, 2):
            a(f"s_memtime s[{S_TS+2*(i+3)}:{S_TS+2*(i+3)+1}]")


def endpgm(a):
    if OPT["stamps"]:
        a("s_waitcnt vmcnt(0)")
        stamp(a, 7)
        a("s_mov_b64 exec, -1")
        a("v_lshrrev_b32 v0, 6, v0")
        a("s_lshl_b32 s3, s2, 3")
        a("v_add_u32 v0, s3, v0")
        a("v_lshlrev_b32 v0, 6, v0")
        a(f"s_mov_b32 s3, {hx(TS_OFF)}")
        a("s_waitcnt lgkmcnt(0)")
        for i in range(0, 8, 2):
            for e in range(4):
                a(f"v_mov_b32 v{4+e}, s{S_TS+2*i+e}")
            a(f"buffer_store_dwordx4 v[4:7], v0, {srd(SRD_WS)}, s3 offen offset:{i*8}")
            a("s_nop 1")
    a("s_endpgm")


def make_srd(a, dst, ptr, size):
    a(f"s_mov_b32 s{dst}, s{ptr}")
    a(f"s_and_b32 s{dst+1}, s{ptr+1}, 0xffff")
    a(f"s_mov_b32 s{dst+2}, {hx(size)}")
    a(f"s_mov_b32 s{dst+3}, 0x20000")


class LdsAddr:
    def __init__(self, a, va, base_reg, max_const, min_const=0):
        self.r0 = min_const // 65536
        self.regs = {}
        for r in range(self.r0, max_const // 65536 + 1):
            if r == 0:
                self.regs[r] = base_reg
            else:
                x = va()
                a(f"v_add_u32 {v(x)}, {hx(65536*r)}, {v(base_reg)}")
                self.regs[r] = x

    def at(self, const):
        r = const // 65536
        return f"{v(self.regs[r])} offset:{const - r*65536}"


class VmQ:
    def __init__(self, a, pre=0):
        self.a = a
        self.issued = pre
        self.done = 0

    def issue(self, text):
        self.a(text)
        self.issued += 1
        return self.issued

    def need(self, tok):
        if tok <= self.done:
            return
        n = min(63, self.issued - tok)
        self.a(f"s_waitcnt vmcnt({n})")
        self.done = self.issued - n


def cmul(a, d, x, y):
    a(f"v_mul_f32 {v(d)}, {v(x)}, {v(y)}")
    a(f"v_mul_f32 {v(d+1)}, {v(x)}, {v(y+1)}")
    a(f"v_fma_f32 {v(d)}, -{v(x+1)}, {v(y+1)}, {v(d)}")
    a(f"v_fma_f32 {v(d+1)}, {v(x+1)}, {v(y)}, {v(d+1)}")


def cfma(a, d, x, y, c):
    a(f"v_fma_f32 {v(d)}, {v(x)}, {v(y)}, {v(c)}")
    a(f"v_fma_f32 {v(d+1)}, {v(x)}, {v(y+1)}, {v(c+1)}")
    a(f"v_fma_f32 {v(d)}, -{v(x+1)}, {v(y+1)}, {v(d)}")
    a(f"v_fma_f32 {v(d+1)}, {v(x+1)}, {v(y)}, {v(d+1)}")


def cpow(a, d, n_f, la, lb, t):
    a(f"v_mul_f32 {v(t)}, {v(n_f)}, {v(la)}")
    a(f"v_mul_f32 {v(d+1)}, {v(n_f)}, {v(lb)}")
    a(f"v_exp_f32 {v(t)}, {v(t)}")
    a(f"v_fract_f32 {v(d+1)}, {v(d+1)}")
    a(f"v_cos_f32 {v(d)}, {v(d+1)}")
    a(f"v_sin_f32 {v(d+1)}, {v(d+1)}")
    a(f"v_mul_f32 {v(d)}, {v(d)}, {v(t)}")
    a(f"v_mul_f32 {v(d+1)}, {v(d+1)}, {v(t)}")


def pk_cfma(a, dre, dim, L, sre, sim, ure, uim):
    a(f"v_pk_fma_f32 {v(dre,2)}, {v(L,2)}, {v(sre,2)}, {v(ure,2)} op_sel:[0,0,0] op_sel_hi:[0,1,1]")
    a(f"v_pk_fma_f32 {v(dim,2)}, {v(L,2)}, {v(sim,2)}, {v(uim,2)} op_sel:[0,0,0] op_sel_hi:[0,1,1]")
    a(f"v_pk_fma_f32 {v(dre,2)}, {v(L,2)}, {v(sim,2)}, {v(dre,2)} op_sel:[1,0,0] op_sel_hi:[1,1,1] neg_lo:[1,0,0] neg_hi:[1,0,0]")
    a(f"v_pk_fma_f32 {v(dim,2)}, {v(L,2)}, {v(sre,2)}, {v(dim,2)} op_sel:[1,0,0] op_sel_hi:[1,1,1]")


def gelu_pk(pairs, temps, K, ONE):
    out = []
    n = len(temps)
    for i in range(0, len(pairs), n):
        g = pairs[i:i + n]
        tt = temps[:len(g)]
        out += [f"v_pk_mul_f32 {v(t,2)}, {v(x,2)}, {v(x,2)}" for x, t in zip(g, tt)]
        out += [f"v_pk_fma_f32 {v(t,2)}, {v(t,2)}, {v(K,2)}, {v(K,2)} op_sel:[0,0,1] op_sel_hi:[1,0,1]" for t in tt]
        out += [f"v_pk_mul_f32 {v(t,2)}, {v(t,2)}, {v(x,2)}" for x, t in zip(g, tt)]
        for t in tt:
            out += [f"v_exp_f32 {v(t)}, {v(t)}", f"v_exp_f32 {v(t+1)}, {v(t+1)}"]
        if len(tt) == 1:
            out.append("s_nop 0")
        out += [f"v_pk_add_f32 {v(t,2)}, {v(t,2)}, {v(ONE,2)} op_sel_hi:[1,0]" for t in tt]
        for t in tt:
            out += [f"v_rcp_f32 {v(t)}, {v(t)}", f"v_rcp_f32 {v(t+1)}, {v(t+1)}"]
        if len(tt) == 1:
            out.append("s_nop 0")
        out += [f"v_pk_mul_f32 {v(x,2)}, {v(x,2)}, {v(t,2)}" for x, t in zip(g, tt)]
    return out


def gelu_consts(a, K, ONE):
    k = 2.0 * math.sqrt(2.0 / math.pi)
    a(f"v_mov_b32 {v(K)}, {hx(f2u(-k*LOG2E*0.044715))}")
    a(f"v_mov_b32 {v(K+1)}, {hx(f2u(-k*LOG2E))}")
    a(f"v_mov_b32 {v(ONE)}, 1.0")
    a(f"v_mov_b32 {v(ONE+1)}, 1.0")


def poll(a, loads, tags, notneed, first_issued=False, sleep=1, cslot=None):
    PL, PD, PC = a.newlabel("poll"), a.newlabel("polled"), a.newlabel("pollchk")
    a(f"s_mov_b32 {s(sCnt)}, {hx(OPT['spin'])}")
    if first_issued:
        a(f"s_branch {PC}")
    a.label(PL)
    for l in loads:
        a(l)
    a.label(PC)
    a(f"s_mov_b64 {sp(sT3)}, -1")
    a("s_waitcnt vmcnt(0)")
    for lo, hi, li in tags:
        a(f"v_cmp_eq_u32 vcc, {s(sN)}, {v(lo)}")
        a(f"v_cmp_eq_u32 {sp(sT1)}, {s(sN+1)}, {v(hi)}")
        a(f"s_and_b64 vcc, vcc, {sp(sT1)}")
        if notneed[li] is not None:
            a(f"s_or_b64 vcc, vcc, {sp(notneed[li])}")
        a(f"s_and_b64 {sp(sT3)}, {sp(sT3)}, vcc")
    a(f"s_cmp_eq_u64 {sp(sT3)}, -1")
    a(f"s_cbranch_scc1 {PD}")
    a(f"s_sub_u32 {s(sCnt)}, {s(sCnt)}, 1")
    a(f"s_cbranch_scc1 {PD}")
    a(f"s_sleep {sleep}")
    a(f"s_branch {PL}")
    a.label(PD)
    if OPT["stamps"] and OPT["prof"] == "cnt" and cslot is not None:
        a(f"s_sub_u32 s{S_TS+2*cslot}, {hx(OPT['spin'])}, {s(sCnt)}")
        a(f"s_mov_b32 s{S_TS+2*cslot+1}, 0")


def emit_sub(a, ms, rd, rpm, fl=(), fpm=2, tail=()):
    fl = [list(g) if isinstance(g, (list, tuple)) else [g] for g in fl]
    rd = list(rd)
    tail = list(tail)
    for m in ms:
        a(m)
        n = rpm
        while n > 0 and rd:
            a(rd.pop(0))
            n -= 1
        if not rd:
            while n > 0 and tail:
                a(tail.pop(0))
                n -= 1
        n = fpm
        while n > 0 and fl:
            g = fl.pop(0)
            for x in g:
                a(x)
            n -= len(g)
    for x in rd + tail:
        a(x)
    for g in fl:
        for x in g:
            a(x)


sIt, sRa, sRb, sIx = 36, 37, 38, 39


def cond(a, it, fn):
    sk = a.newlabel("c")
    a(f"s_cmp_lg_u32 {s(sIt)}, {it}")
    a(f"s_cbranch_scc1 {sk}")
    fn()
    a.label(sk)


def loop2(a, n, reads, mfmas, rpm, advance, conds=(), first=True):
    L = a.newlabel("loop")
    if first:
        a("s_barrier")
        if callable(first):
            first()
        for r in reads(0):
            a(r)
    a(f"s_mov_b32 {s(sIt)}, 0")
    a.label(L)
    a("s_waitcnt lgkmcnt(0)")
    emit_sub(a, mfmas(0), reads(1), rpm, tail=advance)
    a("s_waitcnt lgkmcnt(0)")
    a("s_barrier")
    for it, fn in conds:
        cond(a, it, fn)
    emit_sub(a, mfmas(1), reads(0), rpm, tail=[f"s_add_u32 {s(sIt)}, {s(sIt)}, 1", f"s_cmp_lt_u32 {s(sIt)}, {n}"])
    a(f"s_cbranch_scc1 {L}")


def ring_adv(a, regs, stage, R, sPos=None, sD=None):
    sPos = sRa if sPos is None else sPos
    sD = sRb if sD is None else sD
    a(f"s_mov_b32 {s(sPos)}, 0")
    out = [f"s_add_u32 {s(sPos)}, {s(sPos)}, 1", f"s_cmp_eq_u32 {s(sPos)}, {R}",
           f"s_cselect_b32 {s(sD)}, {hx(-(R-1)*stage)}, {s(sIx)}", f"s_cselect_b32 {s(sPos)}, 0, {s(sPos)}"]
    a(f"s_mov_b32 {s(sIx)}, {stage}")
    return out + [f"v_add_u32 {v(r)}, {s(sD)}, {v(r)}" for r in regs]


def wave0_poll(a, t, vL, kind):
    sk = a.newlabel("nopoll")
    a(f"s_cmp_lg_u32 {s(sW)}, 0")
    a(f"s_cbranch_scc1 {sk}")
    fl, pl = t[6], t[2]
    if kind == 'g':
        a(f"s_mov_b32 {s(sT0)}, {hx(FZ_OFF)}")
        a(f"v_lshl_add_u32 {v(fl)}, {v(vL)}, 4, {s(sT0)}")
        a(f"s_lshl_b32 {s(sT0)}, {s(sRole)}, 2")
        a(f"s_add_u32 {s(sT1)}, {s(sT0)}, 4")
        for b in range(2):
            a(f"v_and_b32 {v(t[0])}, 3, {v(vL)}")
            a(f"v_lshl_add_u32 {v(t[0])}, {v(t[0])}, 1, {b}")
            a(f"v_min_u32 {v(t[1])}, 3, {v(t[0])}")
            a(f"v_mad_u32_u24 {v(t[0])}, {v(t[0])}, 5, {v(t[1])}")
            a(f"v_add_u32 {v(t[1])}, 6, {v(t[0])}")
            a(f"v_cmp_le_u32 vcc, {s(sT1)}, {v(t[0])}")
            a(f"v_cmp_ge_u32 s[{20+2*b}:{21+2*b}], {s(sT0)}, {v(t[1])}")
            a(f"s_or_b64 s[{20+2*b}:{21+2*b}], s[{20+2*b}:{21+2*b}], vcc")
        poll(a, [f"buffer_load_dwordx4 {v(pl,4)}, {v(fl)}, {srd(SRD_WS)}, 0 offen sc1"],
             [(pl, pl + 1, 0), (pl + 2, pl + 3, 1)], [20, 22], sleep=OPT["sleep"], cslot=3)
    elif kind == 'y':
        a(f"s_lshl_b32 {s(sT0)}, {s(sRB2)}, 6")
        a(f"s_add_u32 {s(sT0)}, {s(sT0)}, {hx(FH_OFF)}")
        a(f"v_and_b32 {v(t[0])}, 7, {v(vL)}")
        a(f"v_lshl_add_u32 {v(fl)}, {v(t[0])}, 3, {s(sT0)}")
        poll(a, [f"buffer_load_dwordx2 {v(pl,2)}, {v(fl)}, {srd(SRD_WS)}, 0 offen sc1"], [(pl, pl + 1, 0)], [None], sleep=OPT["sleep"], cslot=3)
    else:
        a(f"s_lshl_b32 {s(sT0)}, {s(sRB2)}, 9")
        a(f"s_add_u32 {s(sT0)}, {s(sT0)}, {hx(F2_OFF)}")
        a(f"v_lshl_add_u32 {v(fl)}, {v(vL)}, 3, {s(sT0)}")
        a(f"v_lshrrev_b32 {v(t[0])}, 2, {v(vL)}")
        a(f"v_bfe_u32 {v(t[1])}, {v(vL)}, 1, 1")
        a(f"v_cmp_ne_u32 s[20:21], {s(sTH3)}, {v(t[1])}")
        a(f"v_subrev_u32 {v(t[0])}, 11, {v(t[0])}")
        a(f"v_cmp_gt_u32 s[22:23], 4, {v(t[0])}")
        a(f"s_lshr_b32 {s(sT0)}, {s(sDT)}, 1")
        a(f"v_cmp_ne_u32 s[24:25], {s(sT0)}, {v(t[0])}")
        a(f"s_and_b32 {s(sT0)}, {s(sDT)}, 1")
        a(f"v_and_b32 {v(t[1])}, 1, {v(vL)}")
        a(f"v_cmp_ne_u32 vcc, {s(sT0)}, {v(t[1])}")
        a(f"s_or_b64 s[24:25], s[24:25], vcc")
        a(f"s_and_b64 s[22:23], s[22:23], s[24:25]")
        a(f"s_or_b64 s[20:21], s[20:21], s[22:23]")
        poll(a, [f"buffer_load_dwordx2 {v(pl,2)}, {v(fl)}, {srd(SRD_WS)}, 0 offen sc1"], [(pl, pl + 1, 0)], [20], sleep=OPT["sleep"], cslot=4)
    a.label(sk)


def zero_regs(a, base, n):
    for i in range(0, n, 2):
        a(f"v_mov_b64 {v(base+i,2)}, 0")


def store_flag(a, vtmp, sOffExprReg, ctr=None):
    a(f"v_mov_b32 {v(vtmp)}, {s(sN)}")
    a(f"v_mov_b32 {v(vtmp+1)}, {s(sN+1)}")
    a("s_mov_b64 exec, 1")
    if ctr is not None:
        sk = a.newlabel("notlast")
        a(f"v_mov_b32 {v(vtmp+2)}, {hx(ctr)}")
        a(f"v_mov_b32 {v(vtmp+3)}, 1")
        a("s_waitcnt vmcnt(0)")
        a(f"ds_add_rtn_u32 {v(vtmp+3)}, {v(vtmp+2)}, {v(vtmp+3)}")
        a(f"v_mov_b32 {v(vtmp+2)}, 0")
        a("s_waitcnt lgkmcnt(0)")
        a(f"v_cmp_eq_u32 vcc, 3, {v(vtmp+3)}")
        a(f"s_cbranch_vccz {sk}")
        a(f"buffer_store_dwordx2 {v(vtmp,2)}, {v(vtmp+2)}, {srd(SRD_WS)}, {s(sOffExprReg)} offen sc1")
        a.label(sk)
    else:
        a(f"v_mov_b32 {v(vtmp+2)}, 0")
        a("s_waitcnt vmcnt(0)")
        a(f"buffer_store_dwordx2 {v(vtmp,2)}, {v(vtmp+2)}, {srd(SRD_WS)}, {s(sOffExprReg)} offen sc1")
    a("s_mov_b64 exec, -1")


def zero_ctr(a, t0, t1, addr):
    a(f"v_mov_b32 {v(t0)}, {hx(addr)}")
    a(f"v_mov_b32 {v(t1)}, 0")
    a(f"ds_write_b32 {v(t0)}, {v(t1)}")


U_CTR = 131072
Z_CTR = 145408
Z_STAGE, U_STAGE, P1_R = 28672, 32768, 5
GW_R, GZ_R = 6, 8
YC_R, YH_R = 4, 6


def gen(a):
    a.label(KNAME)
    a("s_cmp_ge_u32 s2, 256")
    a("s_cbranch_scc1 L_end")
    if OPT["stamps"]:
        for i in range(8):
            a(f"s_mov_b64 s[{S_TS+2*i}:{S_TS+2*i+1}], 0")
    stamp(a, 0)
    a("s_load_dwordx16 s[16:31], s[0:1], 0")
    a("s_load_dwordx16 s[32:47], s[0:1], 64")
    a("s_load_dwordx4 s[48:51], s[0:1], 128")
    a(f"s_memrealtime {sp(sN)}")
    vL = 1
    a(f"v_lshrrev_b32 v2, 6, v0")
    a(f"v_and_b32 {v(vL)}, 63, v0")
    a(f"v_readfirstlane_b32 {s(sW)}, v2")
    a(f"s_and_b32 {s(sT0)}, s2, 7")
    a(f"s_lshr_b32 {s(sT1)}, s2, 3")
    a(f"s_lshr_b32 {s(sRB1)}, {s(sT0)}, 1")
    a(f"s_lshl_b32 {s(sRB1)}, {s(sRB1)}, 2")
    a(f"s_and_b32 {s(sT2)}, {s(sT1)}, 3")
    a(f"s_add_u32 {s(sRB1)}, {s(sRB1)}, {s(sT2)}")
    a(f"s_lshr_b32 {s(sIsZ)}, {s(sT1)}, 4")
    a(f"s_bfe_u32 {s(sCol)}, {s(sT1)}, 0x20002")
    a(f"s_and_b32 {s(sT2)}, {s(sT0)}, 1")
    a(f"s_lshl_b32 {s(sT2)}, {s(sT2)}, 2")
    a(f"s_add_u32 {s(sCol)}, {s(sCol)}, {s(sT2)}")
    a(f"s_lshl_b32 {s(sRB2)}, {s(sT0)}, 1")
    a(f"s_add_u32 {s(sRB2)}, {s(sRB2)}, {s(sIsZ)}")
    a(f"s_and_b32 {s(sRole)}, {s(sT1)}, 15")
    a(f"s_and_b32 {s(sDT)}, {s(sT1)}, 7")
    a(f"s_bfe_u32 {s(sTH3)}, {s(sT1)}, 0x10003")
    if OPT["rot"]:
        a(f"s_lshl_b32 {s(sK1)}, {s(sRB1)}, 1")
        a(f"s_add_u32 {s(sK1)}, {s(sK1)}, {s(sCol)}")
    else:
        a(f"s_mov_b32 {s(sK1)}, 0")
    a(f"s_cmp_lt_u32 {s(sW)}, 4")
    a("s_cbranch_scc1 L_cons")
    hi_l = gen_loader(a, vL)
    a.label("L_cons")
    hi_c = gen_consumer(a, vL)
    a.label("L_end")
    a("s_endpgm")
    return max(hi_l, hi_c)


Z_U0 = [0, 6, 12, 18, 23, 28, 33, 38]


def s_unit0(a, dst, zt, tmp):
    a(f"s_mul_i32 {s(dst)}, {s(zt)}, 5")
    a(f"s_min_u32 {s(tmp)}, {s(zt)}, 3")
    a(f"s_add_u32 {s(dst)}, {s(dst)}, {s(tmp)}")


def gen_loader(a, vL):
    va = Alloc(2, 64, 'v')
    t = [va() for _ in range(4)]
    vX = [va() for _ in range(4)]
    vB = [va() for _ in range(4)]
    vPg = [va() for _ in range(4)]
    vLin, vOg, vOg1, vFl = [va() for _ in range(4)]
    vPoll = va(4, 4)
    sLW = sW
    sKa = sT3
    sKx, sKw, sKp, sKd, sM1 = 20, 21, 22, 23, 30
    a(f"s_sub_u32 {s(sLW)}, {s(sW)}, 4")
    a(f"s_lshl_b32 {s(sM0)}, {s(sLW)}, 12")
    vCh = t[3]
    a(f"v_and_b32 {v(t[0])}, 7, {v(vL)}")
    a(f"v_lshrrev_b32 {v(t[1])}, 4, {v(vL)}")
    a(f"v_xor_b32 {v(vCh)}, {v(t[0])}, {v(t[1])}")
    a(f"v_lshlrev_b32 {v(vCh)}, 4, {v(vCh)}")
    a(f"v_lshrrev_b32 {v(t[2])}, 3, {v(vL)}")
    a(f"s_cmp_eq_u32 {s(sIsZ)}, 1")
    a("s_cbranch_scc1 L_zload")

    def rows4(dst, rowreg, sh):
        a(f"v_lshl_add_u32 {v(dst[0])}, {v(rowreg)}, {sh}, {v(vCh)}")
        a(f"v_xor_b32 {v(dst[1])}, 64, {v(dst[0])}")
        a(f"v_add_u32 {v(dst[2])}, {(16<<sh)-2048}, {v(dst[0])}")
        a(f"v_add_u32 {v(dst[3])}, {(24<<sh)-3072}, {v(dst[1])}")
        a(f"v_add_u32 {v(dst[1])}, {(8<<sh)-1024}, {v(dst[1])}")

    def setup_rest():
        make_srd(a, SRD_WS, P_WS, WS_SIZE)
        make_srd(a, SRD_O, P_WOUT, 688 * 1024)
        make_srd(a, SRD_PB, P_CIM, 512 * 1024)
        ly, ld = a.newlabel("ysetup"), a.newlabel("setupdone")
        a(f"v_lshrrev_b32 {v(t[0])}, 3, {v(vL)}")
        a(f"s_lshl_b32 {s(sT0)}, {s(sLW)}, 5")
        a(f"v_add_u32 {v(t[0])}, {s(sT0)}, {v(t[0])}")
        a(f"s_sub_u32 {s(sT1)}, {s(sRole)}, 11")
        a(f"s_cmp_lt_u32 {s(sT1)}, 4")
        a(f"s_cbranch_scc1 {ly}")
        make_srd(a, SRD_PA, P_WSP, 2048 * 4096)
        a(f"s_lshl_b32 {s(sT0)}, {s(sRB2)}, 7")
        a(f"v_add_u32 {v(t[0])}, {s(sT0)}, {v(t[0])}")
        rows4(vPg, t[0], 12)
        a(f"s_movk_i32 {s(sMask2)}, {31*128}")
        a(f"s_mul_i32 {s(sK2)}, {s(sRole)}, {3*128 if OPT['rot'] else 0}")
        a(f"s_lshl_b32 {s(sT0)}, {s(sRole)}, 18")
        a(f"s_lshl_b32 {s(sT1)}, {s(sLW)}, 11")
        a(f"s_add_u32 {s(sT0)}, {s(sT0)}, {s(sT1)}")
        a(f"s_add_u32 {s(sT0)}, {s(sT0)}, {hx(Z2N_OFF)}")
        a(f"v_lshl_add_u32 {v(vLin)}, {v(vL)}, 4, {s(sT0)}")
        a(f"s_branch {ld}")
        a.label(ly)
        make_srd(a, SRD_PA, P_CRE, 512 * 1024)
        a(f"s_lshl_b32 {s(sT0)}, {s(sT1)}, 7")
        a(f"v_add_u32 {v(t[0])}, {s(sT0)}, {v(t[0])}")
        rows4(vPg, t[0], 10)
        a(f"s_movk_i32 {s(sMask2)}, {7*128}")
        a(f"s_mul_i32 {s(sK2)}, {s(sT1)}, {2*128 if OPT['rot'] else 0}")
        a(f"s_lshl_b32 {s(sT0)}, {s(sRB2)}, 18")
        a(f"s_add_u32 {s(sT0)}, {s(sT0)}, {s(sM0)}")
        a(f"s_add_u32 {s(sT0)}, {s(sT0)}, {hx(H_OFF)}")
        a(f"v_lshl_add_u32 {v(vLin)}, {v(vL)}, 4, {s(sT0)}")
        a.label(ld)
        a(f"s_and_b32 {s(sK2)}, {s(sK2)}, {s(sMask2)}")
        a(f"s_mov_b32 {s(sKp)}, {s(sK2)}")
        a(f"s_mov_b32 {s(sKd)}, {s(sK2)}")
        a(f"v_lshrrev_b32 {v(t[0])}, 3, {v(vL)}")
        a(f"s_lshl_b32 {s(sT0)}, {s(sLW)}, 4")
        a(f"v_add_u32 {v(t[0])}, {s(sT0)}, {v(t[0])}")
        a(f"v_and_b32 {v(t[1])}, 7, {v(vL)}")
        a(f"v_bfe_u32 {v(t[2])}, {v(vL)}, 4, 1")
        a(f"v_lshlrev_b32 {v(t[2])}, 2, {v(t[2])}")
        a(f"v_xor_b32 {v(t[1])}, {v(t[1])}, {v(t[2])}")
        a(f"s_lshl_b32 {s(sT0)}, {s(sDT)}, 7")
        a(f"v_lshl_add_u32 {v(vOg)}, {v(t[1])}, 4, {s(sT0)}")
        a(f"v_lshl_add_u32 {v(vOg)}, {v(t[0])}, 10, {v(vOg)}")
        a(f"v_add_u32 {v(vOg1)}, {8192-1024}, {v(vOg)}")

    def p1_loader(kind):
        q = VmQ(a)
        z = kind == 'z'
        nst = 16 if z else 8
        stage = Z_STAGE if z else U_STAGE
        tok = {}
        a(f"s_and_b32 {s(sKx)}, {s(sK1)}, 7")
        if z:
            a(f"s_mul_i32 {s(sKw)}, {s(sKx)}, {64*2752}")
            a(f"s_mov_b32 s24, {64*2752}")
            a(f"s_mov_b32 s25, {8*64*2752}")
            a(f"s_mul_i32 {s(sM1)}, {s(sLW)}, 3072")
        a(f"s_mov_b32 m0, {s(sM0)}")
        a(f"s_lshl_b32 {s(sKx)}, {s(sKx)}, 7")

        def issue_step(k):
            slot = (k % P1_R) * stage
            if k:
                a(f"s_add_u32 m0, {s(sM0)}, {slot}")
                a(f"s_and_b32 {s(sKx)}, {s(sKx)}, 0x380")
            for e in range(4):
                q.issue(f"buffer_load_dwordx4 {v(vX[e])}, {srd(SRD_X)}, {s(sKx)} offen offset:{e*1024}{OPT['ntx']} lds")
            a(f"s_add_u32 m0, {s(sM1 if z else sM0)}, {slot+16384}")
            if z:
                if k == 8:
                    for p in range(3):
                        a(f"v_subrev_u32 {v(vB[p])}, 1376, {v(vB[p])}")
                a(f"s_addk_i32 {s(sKx)}, 128")
                for p in range(3):
                    tok[k] = q.issue(f"buffer_load_dwordx4 {v(vB[p])}, {srd(SRD_B)}, {s(sKw)} offen offset:{p*1024} lds")
                a(f"s_add_u32 {s(sKw)}, {s(sKw)}, s24")
                a(f"s_cmp_eq_u32 {s(sKw)}, s25")
                a(f"s_cselect_b32 {s(sKw)}, 0, {s(sKw)}")
            else:
                a("s_nop 0")
                for e in range(4):
                    tok[k] = q.issue(f"buffer_load_dwordx4 {v(vB[e])}, {srd(SRD_B)}, {s(sKx)} offen offset:{e*1024} lds")
                a(f"s_addk_i32 {s(sKx)}, 128")

        for k in range(P1_R):
            issue_step(k)
        setup_rest()
        q.need(tok[0])
        a("s_barrier")
        stamp(a, 1)
        for k in range(1, nst + 1):
            if k >= 2 and k - 2 + P1_R < nst:
                issue_step(k - 2 + P1_R)
            if k < nst:
                q.need(tok[k])
            a("s_barrier")
            if k in ((9, 11, 13) if z else (4, 5, 6)):
                stamp(a, "abc"[((9, 11, 13) if z else (4, 5, 6)).index(k)])
        stamp(a, 2)
        a("s_branch L_p2load")

    a(f"s_lshl_b32 {s(sT0)}, {s(sRB1)}, 7")
    a(f"s_lshl_b32 {s(sT1)}, {s(sLW)}, 2")
    a(f"s_add_u32 {s(sT0)}, {s(sT0)}, {s(sT1)}")
    a(f"v_lshrrev_b32 {v(t[0])}, 5, {v(vL)}")
    a(f"v_bfe_u32 {v(t[1])}, {v(vL)}, 3, 1")
    a(f"v_lshlrev_b32 {v(t[0])}, 1, {v(t[0])}")
    a(f"v_add_u32 {v(t[0])}, {v(t[0])}, {v(t[1])}")
    a(f"v_bfe_u32 {v(t[1])}, {v(vL)}, 4, 1")
    a(f"v_lshl_add_u32 {v(t[0])}, {v(t[0])}, 4, {v(t[1])}")
    a(f"v_add_u32 {v(t[0])}, {s(sT0)}, {v(t[0])}")
    a(f"v_lshl_add_u32 {v(vX[0])}, {v(t[0])}, 10, {v(vCh)}")
    a(f"v_xor_b32 {v(vX[1])}, 64, {v(vX[0])}")
    a(f"v_mov_b32 {v(vX[2])}, {v(vX[0])}")
    a(f"v_add_u32 {v(vX[3])}, {66*1024-3072}, {v(vX[1])}")
    a(f"v_add_u32 {v(vX[1])}, {64*1024-1024}, {v(vX[1])}")
    a(f"s_lshl_b32 {s(sT0)}, {s(sCol)}, 6")
    a(f"s_and_b32 {s(sT1)}, {s(sLW)}, 1")
    a(f"s_lshl_b32 {s(sT1)}, {s(sT1)}, 5")
    a(f"s_add_u32 {s(sT0)}, {s(sT0)}, {s(sT1)}")
    a(f"v_add_u32 {v(t[0])}, {s(sT0)}, {v(t[2])}")
    rows4(vB, t[0], 10)
    a("s_waitcnt lgkmcnt(0)")
    make_srd(a, SRD_X, P_X, 2048 * 1024)
    a(f"s_cmp_lt_u32 {s(sLW)}, 2")
    a(f"s_cselect_b32 s{SRD_B}, s{P_BRE}, s{P_BIM}")
    a(f"s_cselect_b32 s{SRD_B+1}, s{P_BRE+1}, s{P_BIM+1}")
    a(f"s_and_b32 s{SRD_B+1}, s{SRD_B+1}, 0xffff")
    a(f"s_mov_b32 s{SRD_B+2}, {hx(512*1024)}")
    a(f"s_mov_b32 s{SRD_B+3}, 0x20000")
    sM1 = 30
    p1_loader('u')
    a.label("L_zload")
    a(f"s_lshl_b32 {s(sT0)}, {s(sRB1)}, 7")
    a(f"s_lshl_b32 {s(sT1)}, {s(sLW)}, 5")
    a(f"s_add_u32 {s(sT0)}, {s(sT0)}, {s(sT1)}")
    a(f"v_add_u32 {v(t[0])}, {s(sT0)}, {v(t[2])}")
    rows4(vX, t[0], 10)
    s_unit0(a, sT0, sCol, sT1)
    a(f"s_lshl_b32 {s(sT0)}, {s(sT0)}, 5")
    a(f"s_add_u32 {s(sT0)}, {s(sT0)}, {2048 + 1376}")
    a(f"v_lshrrev_b32 {v(t[0])}, 2, {v(vL)}")
    a(f"s_lshl_b32 {s(sT1)}, {s(sLW)}, 4")
    a(f"v_add_u32 {v(t[0])}, {s(sT1)}, {v(t[0])}")
    a(f"v_and_b32 {v(t[1])}, 3, {v(vL)}")
    a(f"v_lshrrev_b32 {v(t[2])}, 5, {v(vL)}")
    a(f"v_lshlrev_b32 {v(t[2])}, 1, {v(t[2])}")
    a(f"v_xor_b32 {v(t[1])}, {v(t[1])}, {v(t[2])}")
    a(f"v_mul_u32_u24 {v(vB[0])}, 2752, {v(t[0])}")
    a(f"v_lshl_add_u32 {v(vB[0])}, {v(t[1])}, 4, {v(vB[0])}")
    a(f"v_add_u32 {v(vB[0])}, {s(sT0)}, {v(vB[0])}")
    a(f"v_subrev_u32 {v(vB[1])}, {1024-64}, {v(vB[0])}")
    a(f"v_subrev_u32 {v(vB[2])}, {2048-128}, {v(vB[0])}")
    a("s_waitcnt lgkmcnt(0)")
    make_srd(a, SRD_X, P_X, 2048 * 1024)
    a(f"s_sub_u32 s{SRD_B}, s{P_WIN}, 2048")
    a(f"s_subb_u32 s{SRD_B+1}, s{P_WIN+1}, 0")
    a(f"s_and_b32 s{SRD_B+1}, s{SRD_B+1}, 0xffff")
    a(f"s_mov_b32 s{SRD_B+2}, {hx(512*2752 + 2048)}")
    a(f"s_mov_b32 s{SRD_B+3}, 0x20000")
    p1_loader('z')

    a.label("L_p2load")
    a(f"s_lshr_b32 {s(sM1)}, {s(sM0)}, 1")
    a(f"s_cmp_eq_u32 {s(sRole)}, 15")
    a("s_cbranch_scc1 L_gateload")
    a(f"s_cmp_ge_u32 {s(sRole)}, 11")
    a("s_cbranch_scc1 L_yload")

    def nonce_check():
        ln, lo = a.newlabel("nl"), a.newlabel("nok")
        a(f"s_mov_b32 {s(sCnt)}, {hx(OPT['spin'])}")
        a("s_waitcnt lgkmcnt(0)")
        a.label(ln)
        a(f"s_cmp_lg_u32 {s(sN+1)}, 0")
        a(f"s_cbranch_scc1 {lo}")
        a("s_sleep 32")
        a(f"s_load_dwordx2 {sp(sN)}, {sp(P_DBG)}, 0 glc")
        a("s_waitcnt lgkmcnt(0)")
        a(f"s_sub_u32 {s(sCnt)}, {s(sCnt)}, 1")
        a(f"s_cbranch_scc0 {ln}")
        a.label(lo)

    def p2_loader(kind):
        G = kind == 'g'
        n = 32 if G else 16
        wr, dr = (GW_R, GZ_R) if G else (YC_R, YH_R)
        dsz = 8192 if G else 16384
        dper = 2 if G else 4
        q = VmQ(a)
        tokw, tokd = {}, {}

        def w_dma(k):
            sr = SRD_PA if (G or k < 8) else SRD_PB
            a(f"s_add_u32 m0, {s(sM0)}, {(k % wr) * 16384}")
            a(f"s_and_b32 {s(sKp)}, {s(sKp)}, {s(sMask2)}")
            for e in range(4):
                tokw[k] = q.issue(f"buffer_load_dwordx4 {v(vPg[e])}, {srd(sr)}, {s(sKp)} offen offset:{e*1024}{OPT['ntw'] if G else ''} lds")
            a(f"s_addk_i32 {s(sKp)}, 128")

        def d_dma(k):
            slot = wr * 16384 + (k % dr) * dsz
            a(f"s_and_b32 {s(sKd)}, {s(sKd)}, {s(sMask2)}")
            a(f"s_add_u32 m0, {s(sM1 if G else sM0)}, {slot}")
            a(f"s_lshl_b32 {s(sKa)}, {s(sKd)}, {6 if G else 7}")
            if not G and k >= 8:
                a(f"s_add_u32 {s(sKa)}, {s(sKa)}, {8*16384}")
            for e in range(dper):
                tokd[k] = q.issue(f"buffer_load_dwordx4 {v(vLin)}, {srd(SRD_WS)}, {s(sKa)} offen offset:{e*1024}{OPT['dsc']} lds")
            a(f"s_addk_i32 {s(sKd)}, 128")

        for k in range(wr):
            w_dma(k)
        a("s_barrier")
        stamp(a, 3)
        for k in range(dr):
            d_dma(k)
        q.need(tokd[0])
        a("s_barrier")
        stamp(a, 4)
        for k in range(n):
            if k >= 1:
                if k - 1 + wr < n:
                    w_dma(k - 1 + wr)
                if k - 1 + dr < n:
                    d_dma(k - 1 + dr)
            if k + 1 < n:
                q.need(max(tokd[k + 1], tokw[k + 1]))
            a("s_barrier")
        stamp(a, 5)
        a("s_branch L_p3load")

    p2_loader('g')
    a.label("L_yload")
    p2_loader('y')
    a.label("L_gateload")
    a("s_barrier")
    a.label("L_p3load")
    q = VmQ(a)
    tokw, tok = {}, {}

    def wo_dma(j):
        a(f"s_add_u32 m0, {s(sM1)}, {90112 + (j % 9) * 8192}")
        a(f"s_mov_b32 {s(sKa)}, {j*65536}")
        q.issue(f"buffer_load_dwordx4 {v(vOg)}, {srd(SRD_O)}, {s(sKa)} offen lds")
        tokw[j] = q.issue(f"buffer_load_dwordx4 {v(vOg1)}, {srd(SRD_O)}, {s(sKa)} offen offset:1024 lds")
    for j in range(9):
        wo_dma(j)
    a(f"s_lshl_b32 {s(sT0)}, {s(sRB2)}, 1")
    a(f"s_add_u32 {s(sT0)}, {s(sT0)}, {s(sTH3)}")
    a(f"s_lshl_b32 {s(sT0)}, {s(sT0)}, 1")
    a(f"s_lshr_b32 {s(sT1)}, {s(sLW)}, 1")
    a(f"s_add_u32 {s(sT0)}, {s(sT0)}, {s(sT1)}")
    a(f"s_mul_i32 {s(sT0)}, {s(sT0)}, {44*1024}")
    a(f"s_and_b32 {s(sT1)}, {s(sLW)}, 1")
    a(f"s_lshl_b32 {s(sT1)}, {s(sT1)}, 11")
    a(f"s_add_u32 {s(sT0)}, {s(sT0)}, {s(sT1)}")
    a(f"v_lshl_add_u32 {v(vLin)}, {v(vL)}, 4, {s(sT0)}")
    a(f"s_mov_b32 m0, {s(sM1)}")
    a(f"s_mov_b32 {s(sKa)}, 0")
    a("s_barrier")
    for k in range(11):
        for e in range(2):
            tok[k] = q.issue(f"buffer_load_dwordx4 {v(vLin)}, {srd(SRD_WS)}, {s(sKa)} offen offset:{e*1024}{OPT['dsc']} lds")
        if k < 10:
            a(f"s_addk_i32 m0, 0x2000")
            a(f"s_addk_i32 {s(sKa)}, 0x1000")
    for k in range(11):
        q.need(max(tok[k], tokw[k]))
        a("s_barrier")
        if k == 0:
            stamp(a, 6)
        if k in (1, 2):
            wo_dma(8 + k)
    endpgm(a)
    return 256


def gen_consumer(a, vL):
    va = Alloc(2, 256, 'v')
    t = [va() for _ in range(8)]
    vn, vq = va(), va()
    vN2 = va(2)
    sLo, sHi = 34, 35
    a(f"v_and_b32 {v(vn)}, 15, {v(vL)}")
    a(f"v_lshrrev_b32 {v(vq)}, 4, {v(vL)}")
    vRA = va()
    a(f"v_lshrrev_b32 {v(t[0])}, 1, {v(vn)}")
    a(f"v_xor_b32 {v(t[0])}, {v(t[0])}, {v(vq)}")
    a(f"v_lshlrev_b32 {v(t[0])}, 4, {v(t[0])}")
    a(f"v_lshl_add_u32 {v(vRA)}, {v(vn)}, 7, {v(t[0])}")
    a(f"v_mov_b32 {v(t[7])}, 0")
    a("s_waitcnt lgkmcnt(0)")
    a(f"s_and_b32 {s(sLo)}, {s(sW)}, 1")
    a(f"s_lshr_b32 {s(sHi)}, {s(sW)}, 1")
    sk = a.newlabel("nopub")
    a(f"s_or_b32 {s(sT0)}, s2, {s(sW)}")
    a(f"s_cmp_lg_u32 {s(sT0)}, 0")
    a(f"s_cbranch_scc1 {sk}")
    a(f"s_or_b32 {s(sN+1)}, {s(sN+1)}, 0x80000000")
    a(f"v_mov_b32 {v(vN2)}, {s(sN)}")
    a(f"v_mov_b32 {v(vN2+1)}, {s(sN+1)}")
    a(f"global_store_dwordx2 {v(t[7])}, {v(vN2,2)}, {sp(P_DBG)} sc1")
    a.label(sk)
    make_srd(a, SRD_WS, P_WS, WS_SIZE)
    make_srd(a, SRD_X, P_X, 2048 * 1024)
    vTch = va()
    mark0 = va.mark()

    def touch(kind):
        a(f"s_lshr_b32 {s(sT0)}, s2, 3")
        a(f"s_lshl_b32 {s(sT0)}, {s(sT0)}, 2")
        a(f"s_add_u32 {s(sT0)}, {s(sT0)}, {s(sW)}")
        a(f"s_lshl_b32 {s(sT1)}, {s(sT0)}, 13")
        a(f"v_lshl_add_u32 {v(t[6])}, {v(vL)}, 7, {s(sT1)}")
        if 'w' in kind:
            a(f"s_and_b32 {s(sT2)}, s2, 7")
            a(f"s_lshl_b32 {s(sT2)}, {s(sT2)}, 20")
            a(f"v_add_u32 {v(t[5])}, {s(sT2)}, {v(t[6])}")
            a(f"global_load_dword {v(vTch)}, {v(t[5])}, {sp(P_WSP)}{OPT['ntt']}")
        if 'c' in kind:
            a(f"s_cmp_lt_u32 {s(sT0)}, 64")
            a(f"s_cselect_b32 {s(sT2)}, s{P_CRE}, s{P_CIM}")
            a(f"s_cselect_b32 {s(sT3)}, s{P_CRE+1}, s{P_CIM+1}")
            a(f"s_mov_b32 {s(sT1)}, {s(sT2)}")
            a(f"s_mov_b32 {s(sT2)}, {s(sT3)}")
            a(f"v_and_b32 {v(t[5])}, 0x7ffff, {v(t[6])}")
            a(f"global_load_dword {v(vTch)}, {v(t[5])}, {sp(sT1)}")
        if 'o' in kind:
            a(f"v_min_u32 {v(t[5])}, {688*1024-128}, {v(t[6])}")
            a(f"global_load_dword {v(vTch)}, {v(t[5])}, {sp(P_WOUT)}")
        if '1' in kind:
            a(f"v_lshrrev_b32 {v(t[5])}, 4, {v(vL)}")
            a(f"v_lshl_add_u32 {v(t[5])}, {s(sT0)}, 2, {v(t[5])}")
            a(f"v_mul_u32_u24 {v(t[5])}, 2752, {v(t[5])}")
            a(f"v_and_b32 {v(t[4])}, 15, {v(vL)}")
            a(f"v_min_u32 {v(t[4])}, 11, {v(t[4])}")
            a(f"v_lshl_add_u32 {v(t[5])}, {v(t[4])}, 7, {v(t[5])}")
            a(f"global_load_dword {v(vTch)}, {v(t[5])}, {sp(P_WIN)}")
    if OPT["touch"]:
        touch(OPT["touch"])

    def nonce_issue():
        a(f"v_mov_b32 {v(t[7])}, 0")
        a(f"global_load_dwordx2 {v(vN2,2)}, {v(t[7])}, {sp(P_DBG)} sc1")

    def nonce_finish():
        L, D = a.newlabel("nonce"), a.newlabel("nonce_ok")
        a(f"s_mov_b32 {s(sCnt)}, {hx(OPT['spin'])}")
        a.label(L)
        a("s_waitcnt vmcnt(0)")
        a(f"v_readfirstlane_b32 {s(sN)}, {v(vN2)}")
        a(f"v_readfirstlane_b32 {s(sN+1)}, {v(vN2+1)}")
        a(f"s_cmp_lg_u32 {s(sN+1)}, 0")
        a(f"s_cbranch_scc1 {D}")
        a(f"s_sub_u32 {s(sCnt)}, {s(sCnt)}, 1")
        a(f"s_cbranch_scc1 {D}")
        a("s_sleep 1")
        nonce_issue()
        a(f"s_branch {L}")
        a.label(D)

    a(f"s_cmp_eq_u32 {s(sIsZ)}, 1")
    a("s_cbranch_scc1 L_zcons")
    vCh = va()
    a(f"s_lshl_b32 {s(sT1)}, {s(sW)}, 4")
    a(f"v_add_u32 {v(vCh)}, {s(sT1)}, {v(vn)}")
    a(f"s_lshl_b32 {s(sT0)}, {s(sCol)}, 6")
    a(f"v_add_lshl_u32 {v(t[0])}, {v(vCh)}, {s(sT0)}, 1")
    vLre, vLim, vLdt = va(), va(), va()
    a(f"global_load_ushort {v(vLre)}, {v(t[0])}, {sp(P_LRE)}")
    a(f"global_load_ushort {v(vLim)}, {v(t[0])}, {sp(P_LIM)}")
    a(f"global_load_ushort {v(vLdt)}, {v(t[0])}, {sp(P_LDT)}")
    vRA0, vRA1, vRB0, vRB1 = va(), va(), va(), va()
    a(f"v_mov_b32 {v(vRA0)}, {v(vRA)}")
    a(f"v_xor_b32 {v(vRA1)}, 64, {v(vRA)}")
    a(f"s_lshl_b32 {s(sT0)}, {s(sW)}, 11")
    a(f"s_add_u32 {s(sT0)}, {s(sT0)}, 16384")
    a(f"v_add_u32 {v(vRB0)}, {s(sT0)}, {v(vRA)}")
    a(f"v_add_u32 {v(vRB1)}, {s(sT0)}, {v(vRA1)}")
    RA = [vRA0, vRA1]
    RB = [vRB0, vRB1]
    vla, vlb = va(), va()
    Lm, Cf, M16, M32, MS = [va(2) for _ in range(5)]
    W = [va(2) for _ in range(4)]
    a("s_waitcnt vmcnt(0)")
    a(f"v_lshlrev_b32 {v(vLre)}, 16, {v(vLre)}")
    a(f"v_lshlrev_b32 {v(vLim)}, 16, {v(vLim)}")
    a(f"v_lshlrev_b32 {v(vLdt)}, 16, {v(vLdt)}")
    a(f"v_mul_f32 {v(t[0])}, {hx(f2u(LOG2E))}, {v(vLdt)}")
    a(f"v_exp_f32 {v(t[0])}, {v(t[0])}")
    a("s_nop 0")
    a(f"v_cvt_pk_bf16_f32 {v(t[0])}, {v(t[0])}, {v(t[0])}")
    a(f"v_lshlrev_b32 {v(t[0])}, 16, {v(t[0])}")
    a(f"v_mul_f32 {v(vla)}, {v(t[0])}, {v(vLre)}")
    a(f"v_mul_f32 {v(vlb)}, {v(t[0])}, {v(vLim)}")
    a(f"v_mul_f32 {v(vla)}, {hx(f2u(LOG2E))}, {v(vla)}")
    a(f"v_mul_f32 {v(vlb)}, {hx(f2u(1.0/(2*math.pi)))}, {v(vlb)}")
    a(f"v_mov_b32 {v(t[1])}, 1.0")
    cpow(a, Lm, t[1], vla, vlb, t[2])
    a(f"v_mul_f32 {v(t[2])}, {v(vLre)}, {v(vLre)}")
    a(f"v_fma_f32 {v(t[2])}, {v(vLim)}, {v(vLim)}, {v(t[2])}")
    a(f"v_rcp_f32 {v(t[2])}, {v(t[2])}")
    a(f"v_add_f32 {v(t[3])}, -1.0, {v(Lm)}")
    a(f"v_add_f32 {v(t[2])}, {v(t[2])}, {v(t[2])}")
    a(f"v_mul_f32 {v(Cf)}, {v(t[3])}, {v(vLre)}")
    a(f"v_fma_f32 {v(Cf)}, {v(Lm+1)}, {v(vLim)}, {v(Cf)}")
    a(f"v_mul_f32 {v(Cf+1)}, {v(Lm+1)}, {v(vLre)}")
    a(f"v_fma_f32 {v(Cf+1)}, -{v(t[3])}, {v(vLim)}, {v(Cf+1)}")
    a(f"v_mul_f32 {v(Cf)}, {v(Cf)}, {v(t[2])}")
    a(f"v_mul_f32 {v(Cf+1)}, {v(Cf+1)}, {v(t[2])}")
    a(f"v_mov_b32 {v(t[1])}, {hx(f2u(16.0))}")
    cpow(a, M16, t[1], vla, vlb, t[2])
    a(f"v_mov_b32 {v(t[1])}, {hx(f2u(32.0))}")
    cpow(a, M32, t[1], vla, vlb, t[2])
    a(f"v_lshlrev_b32 {v(t[1])}, 5, {v(vq)}")
    a(f"v_cvt_f32_u32 {v(t[1])}, {v(t[1])}")
    cpow(a, MS, t[1], vla, vlb, t[2])
    NM = [16, 18, 20, 22]
    for i in range(4):
        a(f"s_sub_i32 {s(sT0)}, {s(sRB1)}, {1+4*i}")
        a(f"v_sub_u32 {v(t[3])}, {s(sT0)}, {v(vq)}")
        a(f"v_cmp_gt_i32 {sp(NM[i])}, 0, {v(t[3])}")
        a(f"v_max_i32 {v(t[1])}, 0, {v(t[3])}")
        a(f"v_lshlrev_b32 {v(t[1])}, 7, {v(t[1])}")
        a(f"v_cvt_f32_u32 {v(t[1])}, {v(t[1])}")
        cpow(a, W[i], t[1], vla, vlb, t[2])
    QM = [None, 24, 26, 28]
    for i in range(1, 4):
        a(f"v_cmp_eq_u32 {sp(QM[i])}, {i}, {v(vq)}")
    fx = [[va(4, 4) for u in range(8)] for b in range(2)]
    fb = [[va(4, 4) for p in range(2)] for b in range(2)]
    acc = [[va(4, 4) for u in range(8)] for p in range(2)]

    zero_regs(a, acc[0][0], 64)

    def u_reads(h):
        out = [f"ds_read_b128 {v(fb[h][0],4)}, {v(RB[h])}",
               f"ds_read_b128 {v(fx[h][0],4)}, {v(RA[h])}",
               f"ds_read_b128 {v(fb[h][1],4)}, {v(RB[h])} offset:8192"]
        for u in range(1, 8):
            out.append(f"ds_read_b128 {v(fx[h][u],4)}, {v(RA[h])} offset:{u*2048}")
        return out

    def u_mfmas(h):
        return [f"v_mfma_f32_16x16x32_bf16 {v(acc[p][u],4)}, {v(fx[h][u],4)}, {v(fb[h][p],4)}, {v(acc[p][u],4)}"
                for u in range(8) for p in range(2)]
    adv = ring_adv(a, RA + RB, U_STAGE, P1_R)
    loop2(a, 8, u_reads, u_mfmas, 1, adv, conds=[(4, nonce_issue), (5, lambda: zero_ctr(a, t[0], t[1], U_CTR))], first=lambda: stamp(a, 1))
    stamp(a, 2)
    a("s_waitcnt lgkmcnt(0)")
    Pre = [acc[0][i >> 1] + 2 * (i & 1) for i in range(16)]
    Pim = [acc[1][i >> 1] + 2 * (i & 1) for i in range(16)]
    fr = fx[0][0]
    nonce_finish()
    a("s_nop 3")
    cur = (Pre[0], Pim[0])
    for i in range(1, 16):
        nx = (fr + 4 * (i & 1), fr + 4 * (i & 1) + 2)
        pk_cfma(a, nx[0], nx[1], Lm, cur[0], cur[1], Pre[i], Pim[i])
        cur = nx
    E0, E1, EQ = fr + 8, fr + 10, fr + 12
    a(f"v_mov_b32 {v(E0)}, {v(cur[0])}")
    a(f"v_mov_b32 {v(E0+1)}, {v(cur[1])}")
    a(f"v_mov_b32 {v(E1)}, {v(cur[0]+1)}")
    a(f"v_mov_b32 {v(E1+1)}, {v(cur[1]+1)}")
    cfma(a, E1, M16, E0, E1)
    X = [fr + 16, fr + 18, fr + 20, fr + 22]
    for c in range(2):
        a(f"v_mov_b32 {v(X[0]+c)}, {v(E1+c)}")
        a(f"v_mov_b32 {v(X[2]+c)}, {v(E1+c)}")
    a("s_nop 0")
    for c in range(2):
        a(f"v_permlane32_swap_b32 {v(X[0]+c)}, {v(X[2]+c)}")
    for c in range(2):
        a(f"v_mov_b32 {v(X[1]+c)}, {v(X[0]+c)}")
        a(f"v_mov_b32 {v(X[3]+c)}, {v(X[2]+c)}")
    a("s_nop 0")
    for c in range(2):
        a(f"v_permlane16_swap_b32 {v(X[0]+c)}, {v(X[1]+c)}")
        a(f"v_permlane16_swap_b32 {v(X[2]+c)}, {v(X[3]+c)}")
    cfma(a, X[1], M32, X[0], X[1])
    cfma(a, X[2], M32, X[1], X[2])
    G4 = fr + 24
    cfma(a, G4, M32, X[2], X[3])
    a(f"v_mov_b32 {v(G4+2)}, {s(sN)}")
    a(f"v_mov_b32 {v(G4+3)}, {s(sN+1)}")
    vSc = t[4]
    a(f"s_lshl_b32 {s(sT0)}, {s(sCol)}, 14")
    a(f"s_add_u32 {s(sT0)}, {s(sT0)}, {hx(SC_OFF)}")
    a(f"v_lshl_add_u32 {v(vSc)}, {v(vCh)}, 4, {s(sT0)}")
    a(f"s_lshl_b32 {s(sT0)}, {s(sRB1)}, 10")
    a("s_mov_b64 exec, 0xffff")
    a(f"buffer_store_dwordx4 {v(G4,4)}, {v(vSc)}, {srd(SRD_WS)}, {s(sT0)} offen sc1")
    a("s_mov_b64 exec, -1")
    stamp(a, "a")
    vPo = t[5]
    a(f"v_lshl_add_u32 {v(vPo)}, {v(vq)}, 10, {v(vSc)}")
    GP = [fb[0][0], fb[0][1], fb[1][0], fb[1][1]]
    a(f"s_mov_b32 s30, 4096")
    a(f"s_mov_b32 s31, 8192")
    a(f"s_mov_b32 {s(sT0)}, 12288")
    loads = [f"buffer_load_dwordx4 {v(GP[i],4)}, {v(vPo)}, {srd(SRD_WS)}, {so} offen sc1" for i, so in enumerate(("0", "s30", "s31", s(sT0)))]
    for l in loads:
        a(l)
    PRE = fr + 14
    a(f"v_cndmask_b32 {v(PRE)}, 0, {v(X[0])}, {sp(QM[1])}")
    a(f"v_cndmask_b32 {v(PRE+1)}, 0, {v(X[0]+1)}, {sp(QM[1])}")
    for i in (2, 3):
        a(f"v_cndmask_b32 {v(PRE)}, {v(PRE)}, {v(X[i-1])}, {sp(QM[i])}")
        a(f"v_cndmask_b32 {v(PRE+1)}, {v(PRE+1)}, {v(X[i-1]+1)}, {sp(QM[i])}")
    UR = [fr + 32 + 2 * i for i in range(16)]
    for i in range(16):
        tm = t[2 * (i & 1)]
        a(f"v_pk_mul_f32 {v(UR[i],2)}, {v(Cf,2)}, {v(Pre[i],2)} op_sel:[0,0] op_sel_hi:[0,1]")
        a(f"v_pk_mul_f32 {v(tm,2)}, {v(Cf,2)}, {v(Pim[i],2)} op_sel:[0,0] op_sel_hi:[0,1]")
        a(f"v_pk_fma_f32 {v(UR[i],2)}, {v(Cf,2)}, {v(Pim[i],2)}, {v(UR[i],2)} op_sel:[1,0,0] op_sel_hi:[1,1,1] neg_lo:[1,0,0] neg_hi:[1,0,0]")
        a(f"v_pk_fma_f32 {v(Pim[i],2)}, {v(Cf,2)}, {v(Pre[i],2)}, {v(tm,2)} op_sel:[1,0,0] op_sel_hi:[1,1,1]")
    stamp(a, "b")
    poll(a, loads, [(GP[i] + 2, GP[i] + 3, i) for i in range(4)], NM, first_issued=True, cslot=1)
    stamp(a, "c")
    for i in range(4):
        a(f"v_cndmask_b32 {v(GP[i])}, {v(GP[i])}, 0, {sp(NM[i])}")
        a(f"v_cndmask_b32 {v(GP[i]+1)}, {v(GP[i]+1)}, 0, {sp(NM[i])}")
    cmul(a, t[0], W[0], GP[0])
    for i in range(1, 4):
        cfma(a, t[0], W[i], GP[i], t[0])
    for sw in ("v_permlane16_swap_b32", "v_permlane32_swap_b32"):
        a(f"v_mov_b32 {v(t[2])}, {v(t[0])}")
        a(f"v_mov_b32 {v(t[3])}, {v(t[1])}")
        a("s_nop 1")
        a(f"{sw} {v(t[0])}, {v(t[2])}")
        a(f"{sw} {v(t[1])}, {v(t[3])}")
        a(f"v_add_f32 {v(t[0])}, {v(t[0])}, {v(t[2])}")
        a(f"v_add_f32 {v(t[1])}, {v(t[1])}, {v(t[3])}")
    cfma(a, PRE, MS, t[0], PRE)
    cfma(a, E0, M16, PRE, E0)
    cmul(a, t[0], Cf, PRE)
    cmul(a, t[2], Cf, E0)
    IR, II = X[0], X[1]
    a(f"v_mov_b32 {v(IR)}, {v(t[0])}")
    a(f"v_mov_b32 {v(IR+1)}, {v(t[2])}")
    a(f"v_mov_b32 {v(II)}, {v(t[1])}")
    a(f"v_mov_b32 {v(II+1)}, {v(t[3])}")
    cur = (IR, II)
    for i in range(16):
        pk_cfma(a, UR[i], Pim[i], Lm, cur[0], cur[1], UR[i], Pim[i])
        cur = (UR[i], Pim[i])
    a(f"v_lshlrev_b32 {v(t[0])}, 4, {v(vL)}")
    for m in range(1, 4):
        a(f"v_xor_b32 {v(t[m])}, {64*m}, {v(t[0])}")
    a(f"s_lshl_b32 {s(sT0)}, {s(sRB1)}, 18")
    a(f"s_lshl_b32 {s(sT1)}, {s(sCol)}, 14")
    a(f"s_add_u32 {s(sT0)}, {s(sT0)}, {s(sT1)}")
    a(f"s_lshl_b32 {s(sT1)}, {s(sW)}, 12")
    a(f"s_add_u32 {s(sT0)}, {s(sT0)}, {s(sT1)}")
    a(f"s_add_u32 {s(sT0)}, {s(sT0)}, {hx(H_OFF)}")
    a(f"s_add_u32 {s(sT1)}, {s(sT0)}, {8*16384}")
    O = acc[0][0]
    for part, src, neg in ((0, UR, ""), (1, Pim, "-")):
        for sub in range(2):
            for hf in range(2):
                o = O + 16 * part + 8 * sub + 4 * hf
                for m in range(4):
                    i = 8 * hf + 2 * m
                    a(f"v_cvt_pk_bf16_f32 {v(o+m)}, {neg}{v(src[i]+sub)}, {neg}{v(src[i+1]+sub)}")
                m = 2 * sub + hf
                a(f"buffer_store_dwordx4 {v(o,4)}, {v(t[m])}, {srd(SRD_WS)}, {s(sT1 if part else sT0)} offen offset:{m*1024} sc1")
    a(f"s_lshl_b32 {s(sT0)}, {s(sRB1)}, 6")
    a(f"s_lshl_b32 {s(sT1)}, {s(sCol)}, 3")
    a(f"s_add_u32 {s(sT0)}, {s(sT0)}, {s(sT1)}")
    a(f"s_add_u32 {s(sT0)}, {s(sT0)}, {hx(FH_OFF)}")
    store_flag(a, t[4], sT0, U_CTR)
    stamp(a, "d")
    a("s_branch L_p2cons")

    va.release(mark0)
    a.label("L_zcons")
    vRX0, vRX1 = va(), va()
    a(f"s_lshl_b32 {s(sT0)}, {s(sLo)}, 13")
    a(f"v_add_u32 {v(vRX0)}, {s(sT0)}, {v(vRA)}")
    a(f"v_xor_b32 {v(vRX1)}, 64, {v(vRX0)}")
    RX = [vRX0, vRX1]
    vWr = [va() for _ in range(3)]
    a(f"v_lshrrev_b32 {v(t[0])}, 2, {v(vn)}")
    a(f"v_and_b32 {v(t[1])}, 1, {v(vq)}")
    a(f"v_lshl_add_u32 {v(t[0])}, {v(t[1])}, 3, {v(t[0])}")
    a(f"v_lshlrev_b32 {v(t[0])}, 6, {v(t[0])}")
    a(f"v_lshl_add_u32 {v(t[0])}, {v(t[1])}, 5, {v(t[0])}")
    a(f"v_and_b32 {v(t[1])}, 3, {v(vn)}")
    a(f"v_lshl_add_u32 {v(t[0])}, {v(t[1])}, 3, {v(t[0])}")
    a(f"v_lshrrev_b32 {v(t[1])}, 1, {v(vq)}")
    a(f"v_mul_u32_u24 {v(t[2])}, 3072, {v(t[1])}")
    a(f"s_mul_i32 {s(sT0)}, {s(sHi)}, 3")
    for e in range(3):
        a(f"s_add_u32 {s(sT1)}, {s(sT0)}, {e}")
        a(f"s_and_b32 {s(sT2)}, {s(sT1)}, 1")
        a(f"s_lshl_b32 {s(sT2)}, {s(sT2)}, 5")
        a(f"v_xor_b32 {v(t[1])}, {s(sT2)}, {v(t[0])}")
        a(f"s_lshr_b32 {s(sT1)}, {s(sT1)}, 1")
        a(f"s_lshl_b32 {s(sT1)}, {s(sT1)}, 10")
        a(f"s_add_u32 {s(sT1)}, {s(sT1)}, 16384")
        a(f"v_add3_u32 {v(vWr[e])}, {s(sT1)}, {v(t[1])}, {v(t[2])}")
    K, ONE = va(2), va(2)
    gelu_consts(a, K, ONE)
    sVal = 16
    a(f"s_cmp_ge_u32 {s(sCol)}, 3")
    a(f"s_cselect_b32 {s(sT0)}, {s(sHi)}, 0")
    a(f"s_cmp_eq_u32 {s(sT0)}, 0")
    a(f"s_cselect_b32 s16, 1.0, 0")
    a(f"s_cselect_b32 s17, 1.0, 0")
    a(f"s_cselect_b32 s18, 1, 0")
    fx = [[va(4, 4) for su in range(4)] for b in range(2)]
    fw = [[va(4, 4) for e in range(3)] for b in range(2)]
    acc2 = [[va(4, 4) for e in range(3)] for su in range(4)]
    acc1 = [[va(4, 4) for e in range(3)] for su in range(4)]
    GP = [va(4, 4) for _ in range(8)]
    ST = va(8, 4)
    vLn = va()
    STAT = 143360

    zero_regs(a, acc2[0][0], 96)

    def z_reads(h):
        out = []
        for i in range(4):
            if i < 3:
                out.append(f"ds_read_b64_tr_b16 {v(fw[h][i],2)}, {v(vWr[i])} offset:{h*6144}")
                out.append(f"ds_read_b64_tr_b16 {v(fw[h][i]+2,2)}, {v(vWr[i])} offset:{h*6144+256}")
            out.append(f"ds_read_b128 {v(fx[h][i],4)}, {v(RX[h])} offset:{i*2048}")
        return out

    def z_mfmas(acc):
        return lambda h: [f"v_mfma_f32_16x16x32_bf16 {v(acc[su][e],4)}, {v(fw[h][e],4)}, {v(fx[h][su],4)}, {v(acc[su][e],4)}"
                          for su in range(4) for e in range(3)]

    def after_pass1():
        stamp(a, 2)
        nonce_finish()
        a("s_nop 3")
        pairs = [acc2[su][e] + 2 * i for su in range(4) for e in range(3) for i in range(2)]
        for ins in gelu_pk(pairs, [GP[0], GP[0] + 2, GP[1], GP[1] + 2], K, ONE):
            a(ins)
        for su in range(4):
            for i in range(2):
                a(f"v_pk_mul_f32 {v(acc2[su][2]+2*i,2)}, {v(acc2[su][2]+2*i,2)}, s[16:17]")
        S, Q = [GP[0], GP[0] + 2, GP[1], GP[1] + 2], [GP[2], GP[2] + 2, GP[3], GP[3] + 2]
        for j in range(6):
            for su in range(4):
                x = acc2[su][j >> 1] + 2 * (j & 1)
                if j == 0:
                    a(f"v_pk_mul_f32 {v(Q[su],2)}, {v(x,2)}, {v(x,2)}")
                else:
                    a(f"v_pk_fma_f32 {v(Q[su],2)}, {v(x,2)}, {v(x,2)}, {v(Q[su],2)}")
                if j == 1:
                    a(f"v_pk_add_f32 {v(S[su],2)}, {v(acc2[su][0],2)}, {v(x,2)}")
                elif j > 1:
                    a(f"v_pk_add_f32 {v(S[su],2)}, {v(S[su],2)}, {v(x,2)}")
        for su in range(4):
            a(f"v_add_f32 {v(S[su])}, {v(S[su])}, {v(S[su]+1)}")
            a(f"v_add_f32 {v(Q[su])}, {v(Q[su])}, {v(Q[su]+1)}")
        a("s_nop 0")
        for V in (S, Q):
            a(f"v_permlane16_swap_b32 {v(V[0])}, {v(V[1])}")
            a(f"v_permlane16_swap_b32 {v(V[2])}, {v(V[3])}")
        for V in (S, Q):
            a(f"v_add_f32 {v(V[0])}, {v(V[0])}, {v(V[1])}")
            a(f"v_add_f32 {v(V[2])}, {v(V[2])}, {v(V[3])}")
        a("s_nop 0")
        for V in (S, Q):
            a(f"v_permlane32_swap_b32 {v(V[0])}, {v(V[2])}")
        a(f"v_add_f32 {v(ST)}, {v(S[0])}, {v(S[2])}")
        a(f"v_add_f32 {v(ST+1)}, {v(Q[0])}, {v(Q[2])}")
        a(f"s_lshl_b32 {s(sT0)}, {s(sRB1)}, 14")
        a(f"s_lshl_b32 {s(sT1)}, {s(sLo)}, 10")
        a(f"s_add_u32 {s(sT0)}, {s(sT0)}, {s(sT1)}")
        a(f"s_add_u32 {s(sT0)}, {s(sT0)}, {hx(LN_OFF)}")
        a(f"v_lshl_add_u32 {v(vLn)}, {v(vL)}, 4, {s(sT0)}")
        a(f"s_lshl_b32 {s(sT0)}, {s(sLo)}, 9")
        a(f"s_add_u32 {s(sT0)}, {s(sT0)}, {STAT}")
        a(f"v_lshl_add_u32 {v(t[0])}, {v(vL)}, 3, {s(sT0)}")
        sk = a.newlabel("nowr")
        a(f"s_cmp_eq_u32 {s(sHi)}, 0")
        a(f"s_cbranch_scc1 {sk}")
        a(f"ds_write_b64 {v(t[0])}, {v(ST,2)}")
        a.label(sk)
        stamp(a, "a")

    def publish():
        sk = a.newlabel("nopubln")
        a(f"s_cmp_lg_u32 {s(sHi)}, 0")
        a(f"s_cbranch_scc1 {sk}")
        a(f"ds_read_b64 {v(ST+2,2)}, {v(t[0])}")
        a(f"s_lshl_b32 {s(sT0)}, {s(sCol)}, 11")
        a("s_waitcnt lgkmcnt(0)")
        a(f"v_add_f32 {v(ST)}, {v(ST)}, {v(ST+2)}")
        a(f"v_add_f32 {v(ST+1)}, {v(ST+1)}, {v(ST+3)}")
        a(f"v_mov_b32 {v(ST+2)}, {s(sN)}")
        a(f"v_mov_b32 {v(ST+3)}, {s(sN+1)}")
        a(f"buffer_store_dwordx4 {v(ST,4)}, {v(vLn)}, {srd(SRD_WS)}, {s(sT0)} offen sc1")
        a.label(sk)

    SO = [20, 21, 22]
    lnloads = []
    for i in range(8):
        so = "0" if i < 2 else s(SO[i // 2 - 1])
        lnloads.append(f"buffer_load_dwordx4 {v(GP[i],4)}, {v(vLn)}, {srd(SRD_WS)}, {so} offen offset:{(i&1)*2048} sc1")

    def poll_issue():
        for i in range(3):
            a(f"s_mov_b32 {s(SO[i])}, {(i+1)*4096}")
        for l in lnloads:
            a(l)

    adv = ring_adv(a, vWr + RX, Z_STAGE, P1_R)
    loop2(a, 8, z_reads, z_mfmas(acc2), OPT["rz"], adv, conds=[(4, nonce_issue), (5, lambda: zero_ctr(a, t[0], t[1], Z_CTR))], first=lambda: stamp(a, 1))
    after_pass1()
    loop2(a, 8, z_reads, z_mfmas(acc1), OPT["rz"], adv, conds=[(0, publish), (5, poll_issue)], first=False)
    a("s_waitcnt lgkmcnt(0)")
    stamp(a, "b")
    vZ1, vZ2 = t[4], t[5]
    a(f"v_and_b32 {v(t[0])}, 1, {v(vq)}")
    a(f"v_lshl_add_u32 {v(t[0])}, {v(t[0])}, 4, {v(vn)}")
    a(f"v_lshrrev_b32 {v(t[1])}, 1, {v(vq)}")
    a(f"v_lshl_add_u32 {v(t[0])}, {v(t[0])}, 1, {v(t[1])}")
    a(f"v_lshlrev_b32 {v(vZ1)}, 4, {v(t[0])}")
    sU = 19
    s_unit0(a, sU, sCol, sT0)
    a(f"s_mul_i32 {s(sT0)}, {s(sHi)}, 3")
    a(f"s_add_u32 {s(sU)}, {s(sU)}, {s(sT0)}")
    a(f"s_lshl_b32 {s(sT0)}, {s(sRB1)}, 2")
    a(f"s_lshl_b32 {s(sT1)}, {s(sLo)}, 1")
    a(f"s_add_u32 {s(sT0)}, {s(sT0)}, {s(sT1)}")
    a(f"s_mul_i32 {s(sT0)}, {s(sT0)}, 44")
    a(f"s_add_u32 {s(sT0)}, {s(sT0)}, {s(sU)}")
    a(f"s_lshl_b32 s24, {s(sT0)}, 10")
    a(f"s_add_u32 s25, s24, {44*1024}")

    def pack_store(acc, e, emit_store):
        for vv in range(2):
            x, y = acc[2 * vv][e], acc[2 * vv + 1][e]
            a(f"v_cvt_pk_bf16_f32 {v(x)}, {v(x)}, {v(x+1)}")
            a(f"v_cvt_pk_bf16_f32 {v(x+1)}, {v(x+2)}, {v(x+3)}")
            a(f"v_cvt_pk_bf16_f32 {v(x+2)}, {v(y)}, {v(y+1)}")
            a(f"v_cvt_pk_bf16_f32 {v(x+3)}, {v(y+2)}, {v(y+3)}")
        a("s_nop 0")
        for vv in range(2):
            x = acc[2 * vv][e]
            a(f"v_permlane16_swap_b32 {v(x)}, {v(x+2)}")
            a(f"v_permlane16_swap_b32 {v(x+1)}, {v(x+3)}")
        for vv in range(2):
            emit_store(acc[2 * vv][e], vv)

    poll(a, lnloads, [(GP[i] + 2, GP[i] + 3, i) for i in range(8)], [None] * 8, first_issued=True, cslot=1)
    stamp(a, "c")
    for st_ in (4, 2, 1):
        for i in range(st_):
            a(f"v_pk_add_f32 {v(GP[i],2)}, {v(GP[i],2)}, {v(GP[i+st_],2)}")
    g = GP[0]
    a(f"v_mul_f32 {v(g)}, {hx(f2u(1.0/688))}, {v(g)}")
    a(f"v_mul_f32 {v(g+1)}, {hx(f2u(1.0/688))}, {v(g+1)}")
    a(f"v_fma_f32 {v(g+1)}, -{v(g)}, {v(g)}, {v(g+1)}")
    a(f"v_max_f32 {v(g+1)}, 0, {v(g+1)}")
    a(f"v_add_f32 {v(g+1)}, {hx(f2u(1e-5))}, {v(g+1)}")
    X = [ST, ST + 2, ST + 4, ST + 6]
    a(f"v_rsq_f32 {v(X[0])}, {v(g+1)}")
    a("s_nop 0")
    a(f"v_mul_f32 {v(X[0]+1)}, -{v(g)}, {v(X[0])}")
    a(f"v_mov_b32 {v(X[2])}, {v(X[0])}")
    a(f"v_mov_b32 {v(X[2]+1)}, {v(X[0]+1)}")
    a("s_nop 1")
    for c in range(2):
        a(f"v_permlane32_swap_b32 {v(X[0]+c)}, {v(X[2]+c)}")
    for c in range(2):
        a(f"v_mov_b32 {v(X[1]+c)}, {v(X[0]+c)}")
        a(f"v_mov_b32 {v(X[3]+c)}, {v(X[2]+c)}")
    a("s_nop 0")
    for c in range(2):
        a(f"v_permlane16_swap_b32 {v(X[0]+c)}, {v(X[1]+c)}")
        a(f"v_permlane16_swap_b32 {v(X[2]+c)}, {v(X[3]+c)}")
    a(f"s_lshl_b32 {s(sT0)}, {s(sRB1)}, 1")
    a(f"s_add_u32 {s(sT0)}, {s(sT0)}, {s(sLo)}")
    a(f"s_lshl_b32 {s(sT0)}, {s(sT0)}, 13")
    a(f"s_add_u32 s26, {s(sT0)}, {hx(Z2N_OFF)}")
    skz = a.newlabel("z2skip")
    for e in range(3):
        if e == 2:
            a("s_cmp_eq_u32 s18, 0")
            a(f"s_cbranch_scc1 {skz}")
        a(f"s_add_u32 {s(sT0)}, {s(sU)}, {e}")
        a(f"s_lshr_b32 s27, {s(sT0)}, 2")
        a(f"s_lshl_b32 s27, s27, 18")
        a(f"s_add_u32 s27, s27, s26")
        a(f"s_and_b32 s28, {s(sT0)}, 3")
        a(f"s_lshl_b32 s28, s28, 11")
        a(f"s_add_u32 s27, s27, s28")
        a(f"s_and_b32 {s(sT0)}, {s(sT0)}, 1")
        a(f"s_lshl_b32 {s(sT0)}, {s(sT0)}, 7")
        a(f"v_xor_b32 {v(t[e])}, {s(sT0)}, {v(vZ1)}")
        for su in range(4):
            for i in range(2):
                x = acc2[su][e] + 2 * i
                a(f"v_pk_fma_f32 {v(x,2)}, {v(x,2)}, {v(X[su],2)}, {v(X[su],2)} op_sel:[0,0,1] op_sel_hi:[1,0,1]")
        pack_store(acc2, e, lambda x, vv: a(f"buffer_store_dwordx4 {v(x,4)}, {v(t[e])}, {srd(SRD_WS)}, s27 offen offset:{vv*1024} sc1"))
    a.label(skz)
    skz = a.newlabel("z1skip")
    for e in range(3):
        if e == 2:
            a("s_cmp_eq_u32 s18, 0")
            a(f"s_cbranch_scc1 {skz}")
        pack_store(acc1, e, lambda x, vv: a(f"buffer_store_dwordx4 {v(x,4)}, {v(vZ1)}, {srd(SRD_WS)}, s{24+vv} offen offset:{Z1_OFF + e*1024} sc1"))
    a.label(skz)
    a(f"s_lshl_b32 {s(sT0)}, {s(sRB1)}, 6")
    a(f"s_lshl_b32 {s(sT1)}, {s(sCol)}, 3")
    a(f"s_add_u32 {s(sT0)}, {s(sT0)}, {s(sT1)}")
    a(f"s_add_u32 {s(sT0)}, {s(sT0)}, {hx(FZ_OFF)}")
    store_flag(a, t[4], sT0, Z_CTR)
    stamp(a, "d")

    va.release(mark0)
    a.label("L_p2cons")
    stamp(a, 3)
    sF2 = 30
    a(f"s_lshl_b32 {s(sT0)}, {s(sRB2)}, 9")
    a(f"s_lshl_b32 {s(sT1)}, {s(sRole)}, 5")
    a(f"s_add_u32 {s(sT0)}, {s(sT0)}, {s(sT1)}")
    a(f"s_lshl_b32 {s(sT1)}, {s(sW)}, 3")
    a(f"s_add_u32 {s(sT0)}, {s(sT0)}, {s(sT1)}")
    a(f"s_add_u32 {s(sF2)}, {s(sT0)}, {hx(F2_OFF)}")
    vn5, vh, vP, vTr = va(), va(), va(), va()
    a(f"v_and_b32 {v(vn5)}, 31, {v(vL)}")
    a(f"v_lshrrev_b32 {v(vh)}, 5, {v(vL)}")
    a(f"v_bfe_u32 {v(t[0])}, {v(vL)}, 1, 3")
    a(f"v_xor_b32 {v(t[0])}, {v(t[0])}, {v(vh)}")
    a(f"v_lshlrev_b32 {v(t[0])}, 4, {v(t[0])}")
    a(f"v_lshl_add_u32 {v(vP)}, {v(vn5)}, 7, {v(t[0])}")
    a(f"v_bfe_u32 {v(t[0])}, {v(vL)}, 2, 2")
    a(f"v_lshl_add_u32 {v(t[1])}, {v(vh)}, 3, {v(t[0])}")
    a(f"v_lshlrev_b32 {v(t[1])}, 7, {v(t[1])}")
    a(f"v_lshrrev_b32 {v(t[0])}, 1, {v(t[0])}")
    a(f"v_xor_b32 {v(t[0])}, {s(sLo)}, {v(t[0])}")
    a(f"v_lshl_add_u32 {v(t[1])}, {v(t[0])}, 6, {v(t[1])}")
    a(f"v_bfe_u32 {v(t[0])}, {v(vL)}, 4, 1")
    a(f"v_lshl_add_u32 {v(vTr)}, {v(t[0])}, 5, {v(t[1])}")
    mark2 = va.mark()
    a(f"s_cmp_eq_u32 {s(sRole)}, 15")
    a("s_cbranch_scc1 L_gate")
    a(f"s_cmp_ge_u32 {s(sRole)}, 11")
    a("s_cbranch_scc1 L_ycons")
    x0, x1 = va(), va()
    a(f"v_bfe_u32 {v(t[0])}, {v(vL)}, 4, 1")
    a(f"v_bfe_u32 {v(t[1])}, {v(vL)}, 2, 2")
    a(f"v_lshl_add_u32 {v(t[1])}, {v(t[0])}, 2, {v(t[1])}")
    a(f"v_lshl_add_u32 {v(t[1])}, {v(vh)}, 3, {v(t[1])}")
    a(f"v_lshlrev_b32 {v(t[1])}, 5, {v(t[1])}")
    a(f"v_lshl_add_u32 {v(t[1])}, {v(t[0])}, 11, {v(t[1])}")
    a(f"v_and_b32 {v(t[0])}, 1, {v(vL)}")
    a(f"v_lshl_add_u32 {v(t[1])}, {v(t[0])}, 4, {v(t[1])}")
    a(f"v_bfe_u32 {v(t[0])}, {v(vL)}, 1, 1")
    a(f"v_lshl_add_u32 {v(t[1])}, {v(t[0])}, 3, {v(t[1])}")
    a(f"s_lshl_b32 {s(sT0)}, {s(sLo)}, 12")
    a(f"s_add_u32 {s(sT0)}, {s(sT0)}, {GW_R*16384}")
    a(f"v_add_u32 {v(x0)}, {s(sT0)}, {v(t[1])}")
    a(f"v_xor_b32 {v(x1)}, 128, {v(x0)}")
    pa = [va(), va()]
    a(f"v_mov_b32 {v(pa[0])}, {v(x0)}")
    a(f"v_mov_b32 {v(pa[1])}, {v(x1)}")
    pb = []
    a(f"s_lshl_b32 {s(sT1)}, {s(sHi)}, 13")
    for ss in range(4):
        y = va()
        a(f"v_xor_b32 {v(t[0])}, {32*ss}, {v(vP)}")
        a(f"v_add_u32 {v(y)}, {s(sT1)}, {v(t[0])}")
        pb.append(y)
    K, ONE = va(2), va(2)
    gelu_consts(a, K, ONE)
    z1 = [[va(4, 4) for c in range(2)] for tt in range(2)]
    zg = va(32, 2)
    gt, gx = va(2), va(2)
    bs = [va(2), va(2)]
    vZ, vPo = va(), va()
    a(f"s_lshl_b32 {s(sT0)}, {s(sRB2)}, 7")
    a(f"s_lshl_b32 {s(sT1)}, {s(sHi)}, 6")
    a(f"s_add_u32 {s(sT0)}, {s(sT0)}, {s(sT1)}")
    a(f"v_add_u32 {v(t[0])}, {s(sT0)}, {v(vn5)}")
    a(f"v_lshl_add_u32 {v(vZ)}, {v(vn5)}, 1, {v(vh)}")
    a(f"v_lshlrev_b32 {v(vZ)}, 4, {v(vZ)}")
    a(f"v_lshlrev_b32 {v(t[0])}, 1, {v(t[0])}")
    for tt in range(2):
        a(f"global_load_ushort {v(bs[tt])}, {v(t[0])}, {sp(P_BSP)} offset:{tt*64}")
    a(f"s_lshl_b32 {s(sT0)}, {s(sRB2)}, 1")
    a(f"s_add_u32 {s(sT0)}, {s(sT0)}, {s(sHi)}")
    a(f"s_mul_i32 {s(sT0)}, {s(sT0)}, 88")
    a(f"s_lshl_b32 {s(sT1)}, {s(sRole)}, 1")
    a(f"s_add_u32 {s(sT1)}, {s(sT1)}, {s(sLo)}")
    a(f"s_lshl_b32 {s(sT1)}, {s(sT1)}, 1")
    a(f"s_add_u32 {s(sT0)}, {s(sT0)}, {s(sT1)}")
    a(f"s_lshl_b32 s16, {s(sT0)}, 10")
    a(f"s_add_u32 s17, s16, {44*1024}")
    fA = [[va(4, 4) for ss in range(4)] for b in range(2)]
    fB = [[[va(4, 4) for tt in range(2)] for ss in range(4)] for b in range(2)]
    acc = [va(16, 4) for tt in range(2)]
    zero_regs(a, acc[0], 32)
    a(f"s_mov_b32 {s(sRa)}, 0")
    a(f"s_mov_b32 {s(sRb)}, 0")
    a(f"s_mov_b32 s19, 0x8000")
    a(f"s_mov_b32 {s(sIt)}, 0")
    a(f"s_mov_b32 {s(sIx)}, 0")
    a("s_waitcnt vmcnt(0)")
    a(f"v_lshlrev_b32 {v(bs[0])}, 16, {v(bs[0])}")
    a(f"v_lshlrev_b32 {v(bs[1])}, 16, {v(bs[1])}")
    wave0_poll(a, t, vL, 'g')
    a("s_barrier")
    for tt in range(2):
        for c in range(2):
            a(f"buffer_load_dwordx4 {v(z1[tt][c],4)}, {v(vZ)}, {srd(SRD_WS)}, s{16+tt} offen offset:{Z1_OFF + c*1024} sc1")

    def g_reads(b):
        out = []
        for ss in range(4):
            out.append(f"ds_read_b64_tr_b16 {v(fA[b][ss],2)}, {v(pa[0])} offset:{b*8192+ss*512}")
            out.append(f"ds_read_b64_tr_b16 {v(fA[b][ss]+2,2)}, {v(pa[1])} offset:{b*8192+ss*512}")
            for tt in range(2):
                out.append(f"ds_read_b128 {v(fB[b][ss][tt],4)}, {v(pb[ss])} offset:{b*16384+tt*4096}")
        return out

    def g_mfmas(b):
        return [f"v_mfma_f32_32x32x16_bf16 {v(acc[tt],16)}, {v(fA[b][ss],4)}, {v(fB[b][ss][tt],4)}, {v(acc[tt],16)}"
                for ss in range(4) for tt in range(2)]
    ge = gelu_pk([gx], [gt], K, ONE)
    ge = [x for x in ge if x != "s_nop 0"]
    f1 = ["s_waitcnt vmcnt(0)",
          [f"s_set_gpr_idx_on {s(sIt)}, gpr_idx(SRC0)", f"v_mov_b32 {v(gt)}, {v(z1[0][0])}", "s_set_gpr_idx_off"],
          f"v_lshlrev_b32 {v(gx)}, 16, {v(gt)}", f"v_and_b32 {v(gx+1)}, 0xffff0000, {v(gt)}"] + ge[:3]
    f2 = [[x] for x in ge[3:5]] + [[ge[5]], [ge[6]], [ge[7]]] + [["s_nop 0", ge[8]]] + \
         [[f"s_set_gpr_idx_on {s(sIx)}, gpr_idx(DST)", f"v_mov_b64 {v(zg,2)}, {v(gx,2)}", "s_set_gpr_idx_off"]]
    adv = [f"s_addk_i32 {s(sRa)}, 0x4000", f"s_cmp_eq_u32 {s(sRa)}, {GZ_R*8192}", f"s_cselect_b32 {s(sRa)}, 0, {s(sRa)}",
           f"v_add_u32 {v(pa[0])}, {s(sRa)}, {v(x0)}", f"v_add_u32 {v(pa[1])}, {s(sRa)}, {v(x1)}",
           f"s_add_u32 {s(sRb)}, {s(sRb)}, 2", f"s_cmp_eq_u32 {s(sRb)}, {GW_R}",
           f"s_cselect_b32 s18, {hx(-(GW_R-2)*16384)}, s19", f"s_cselect_b32 {s(sRb)}, 0, {s(sRb)}"]
    adv += [f"v_add_u32 {v(r)}, s18, {v(r)}" for r in pb]
    a("s_barrier")
    stamp(a, 4)
    for r in g_reads(0):
        a(r)
    a.label("L_gloop")
    a("s_waitcnt lgkmcnt(0)")
    a("s_barrier")
    emit_sub(a, g_mfmas(0), g_reads(1), 3, fl=f1, fpm=1, tail=adv)
    a("s_waitcnt lgkmcnt(0)")
    a("s_barrier")
    emit_sub(a, g_mfmas(1), g_reads(0), 3, fl=f2, fpm=1)
    a(f"s_addk_i32 {s(sIx)}, 2")
    a(f"s_addk_i32 {s(sIt)}, 1")
    a(f"s_cmp_lt_u32 {s(sIt)}, 16")
    a("s_cbranch_scc1 L_gloop")
    stamp(a, 5)
    a(f"v_lshlrev_b32 {v(vPo)}, 4, {v(vL)}")
    a("s_waitcnt lgkmcnt(0)")
    a("s_nop 4")
    for tt in range(2):
        for c in range(2):
            o = fA[0][2 * tt + c]
            for i in range(4):
                r = acc[tt] + 8 * c + 2 * i
                a(f"v_pk_add_f32 {v(r,2)}, {v(r,2)}, {v(bs[tt],2)} op_sel_hi:[1,0]")
            for i in range(4):
                r = acc[tt] + 8 * c + 2 * i
                a(f"v_pk_mul_f32 {v(r,2)}, {v(r,2)}, {v(zg + 2*(8*tt+4*c+i),2)}")
            for i in range(4):
                r = acc[tt] + 8 * c + 2 * i
                a(f"v_cvt_pk_bf16_f32 {v(o+i)}, {v(r)}, {v(r+1)}")
            a(f"buffer_store_dwordx4 {v(o,4)}, {v(vPo)}, {srd(SRD_WS)}, s{16+tt} offen offset:{c*1024} sc1")
    store_flag(a, t[0], sF2)
    a("s_branch L_p3cons")
    va.release(mark2)
    a.label("L_ycons")
    sDC = 16
    a(f"s_sub_u32 {s(sDC)}, {s(sRole)}, 11")
    pa = []
    a(f"s_lshl_b32 {s(sT0)}, {s(sLo)}, 13")
    for ss in range(4):
        x = va()
        a(f"v_xor_b32 {v(t[0])}, {32*ss}, {v(vP)}")
        a(f"v_add_u32 {v(x)}, {s(sT0)}, {v(t[0])}")
        pa.append(x)
    a(f"v_bfe_u32 {v(t[0])}, {v(vL)}, 4, 1")
    a(f"v_bfe_u32 {v(t[1])}, {v(vL)}, 1, 1")
    a(f"v_lshl_add_u32 {v(t[0])}, {v(t[0])}, 1, {v(t[1])}")
    a(f"v_bfe_u32 {v(t[1])}, {v(vL)}, 2, 2")
    a(f"v_lshl_add_u32 {v(t[1])}, {v(vh)}, 3, {v(t[1])}")
    a(f"v_lshlrev_b32 {v(t[2])}, 2, {v(t[0])}")
    a(f"v_xor_b32 {v(t[1])}, {v(t[1])}, {v(t[2])}")
    a(f"v_lshlrev_b32 {v(t[1])}, 4, {v(t[1])}")
    a(f"v_lshl_add_u32 {v(t[1])}, {v(t[0])}, 10, {v(t[1])}")
    a(f"v_and_b32 {v(t[0])}, 1, {v(vL)}")
    a(f"v_lshl_add_u32 {v(t[1])}, {v(t[0])}, 3, {v(t[1])}")
    a(f"s_lshl_b32 {s(sT0)}, {s(sHi)}, 9")
    a(f"s_add_u32 {s(sT0)}, {s(sT0)}, 65536")
    y0, y1 = va(), va()
    a(f"v_add_u32 {v(y0)}, {s(sT0)}, {v(t[1])}")
    a(f"v_xor_b32 {v(y1)}, 64, {v(y0)}")
    pb = [va(), va()]
    a(f"v_mov_b32 {v(pb[0])}, {v(y0)}")
    a(f"v_mov_b32 {v(pb[1])}, {v(y1)}")
    fA = [[[va(4, 4) for dd in range(2)] for s2 in range(2)] for b in range(2)]
    fB = [[[va(4, 4) for tt in range(2)] for s2 in range(2)] for b in range(2)]
    acc = [[va(16, 4) for dd in range(2)] for tt in range(2)]
    xs = va(32, 2)
    dk = va(16, 2)
    du = va(32, 2)
    a(f"s_lshl_b32 {s(sT0)}, {s(sDC)}, 8")
    a(f"s_lshl_b32 {s(sT1)}, {s(sLo)}, 7")
    a(f"s_add_u32 {s(sT0)}, {s(sT0)}, {s(sT1)}")
    a(f"v_lshl_add_u32 {v(t[2])}, {v(vh)}, 3, {s(sT0)}")
    a(f"s_lshl_b32 {s(sT0)}, {s(sRB2)}, 7")
    a(f"s_lshl_b32 {s(sT1)}, {s(sHi)}, 6")
    a(f"s_add_u32 {s(sT0)}, {s(sT0)}, {s(sT1)}")
    a(f"v_add_u32 {v(t[0])}, {s(sT0)}, {v(vn5)}")
    a(f"v_lshl_add_u32 {v(t[3])}, {v(t[0])}, 10, {v(t[2])}")
    a(f"s_mov_b32 {s(sT0)}, 32768")
    for dd in range(2):
        for j in range(4):
            a(f"global_load_dwordx2 {v(dk+2*(4*dd+j),2)}, {v(t[2])}, {sp(P_DSK)} offset:{dd*64+j*16}")
    for tt in range(2):
        for dd in range(2):
            for j in range(4):
                a(f"buffer_load_dwordx2 {v(xs+2*(8*tt+4*dd+j),2)}, {v(t[3])}, {srd(SRD_X)}, {s(sT0) if tt else '0'} offen offset:{dd*64+j*16}")
    for tt in range(2):
        zero_regs(a, acc[tt][0], 32)
    make_srd(a, SRD_O, P_OUT, 2048 * 2048)
    a("s_waitcnt vmcnt(16)")
    for i in range(16):
        a(f"v_lshlrev_b32 {v(du+2*i)}, 16, {v(dk+i)}")
        a(f"v_and_b32 {v(du+2*i+1)}, 0xffff0000, {v(dk+i)}")
    a(f"s_mov_b32 {s(sRa)}, 0")
    a(f"s_movk_i32 {s(sRb)}, 0x4000")
    a(f"s_mov_b32 {s(sIx)}, 0xffff")
    wave0_poll(a, t, vL, 'y')
    a("s_barrier")

    def y_reads(h):
        out = []
        for s2 in range(2):
            ss = 2 * h + s2
            for i in range(2):
                out.append(f"ds_read_b128 {v(fA[h][s2][i],4)}, {v(pa[ss])} offset:{i*4096}")
                b = ss * 4096 + i * 256
                out.append(f"ds_read_b64_tr_b16 {v(fB[h][s2][i],2)}, {v(pb[0])} offset:{b}")
                out.append(f"ds_read_b64_tr_b16 {v(fB[h][s2][i]+2,2)}, {v(pb[1])} offset:{b}")
        return out

    def y_mfmas(h):
        return [f"v_mfma_f32_32x32x16_bf16 {v(acc[tt][dd],16)}, {v(fA[h][s2][dd],4)}, {v(fB[h][s2][tt],4)}, {v(acc[tt][dd],16)}"
                for s2 in range(2) for tt in range(2) for dd in range(2)]
    adv = [f"s_addk_i32 {s(sRa)}, 0x4000", f"s_cmp_eq_u32 {s(sRa)}, {6*16384}", f"s_cselect_b32 {s(sRa)}, 0, {s(sRa)}",
           f"v_add_u32 {v(pb[0])}, {s(sRa)}, {v(y0)}", f"v_add_u32 {v(pb[1])}, {s(sRa)}, {v(y1)}"]
    adv += [f"v_add_u32 {v(r)}, {s(sRb)}, {v(r)}" for r in pa] + [f"v_and_b32 {v(r)}, {s(sIx)}, {v(r)}" for r in pa]
    loop2(a, 16, y_reads, y_mfmas, 3, adv, first=lambda: stamp(a, 4))
    stamp(a, 5)
    a(f"s_lshl_b32 {s(sT0)}, {s(sRB2)}, 1")
    a(f"s_add_u32 {s(sT0)}, {s(sT0)}, {s(sHi)}")
    a(f"s_lshl_b32 {s(sT0)}, {s(sT0)}, 17")
    a(f"s_lshl_b32 {s(sT1)}, {s(sDC)}, 1")
    a(f"s_add_u32 {s(sT1)}, {s(sT1)}, {s(sLo)}")
    a(f"s_lshl_b32 {s(sT1)}, {s(sT1)}, 8")
    a(f"s_add_u32 {s(sT0)}, {s(sT0)}, {s(sT1)}")
    a(f"v_lshrrev_b32 {v(t[4])}, 3, {v(vL)}")
    a(f"v_and_b32 {v(t[5])}, 7, {v(vL)}")
    a(f"v_lshlrev_b32 {v(t[5])}, 4, {v(t[5])}")
    a(f"v_lshl_add_u32 {v(t[4])}, {v(t[4])}, 11, {v(t[5])}")
    a("s_waitcnt vmcnt(0)")
    for tt in range(2):
        for j in range(4):
            a(f"s_add_u32 {s(sT1)}, {s(sT0)}, {tt*65536 + j*16384}")
            for dd in range(2):
                r = acc[tt][dd] + 4 * j
                xx = xs + 2 * (8 * tt + 4 * dd + j)
                d = du + 4 * (4 * dd + j)
                a(f"v_lshlrev_b32 {v(t[0])}, 16, {v(xx)}")
                a(f"v_and_b32 {v(t[1])}, 0xffff0000, {v(xx)}")
                a(f"v_lshlrev_b32 {v(t[2])}, 16, {v(xx+1)}")
                a(f"v_and_b32 {v(t[3])}, 0xffff0000, {v(xx+1)}")
                a(f"v_pk_fma_f32 {v(r,2)}, {v(t[0],2)}, {v(d,2)}, {v(r,2)}")
                a(f"v_pk_fma_f32 {v(r+2,2)}, {v(t[2],2)}, {v(d+2,2)}, {v(r+2,2)}")
                a(f"buffer_store_dwordx4 {v(r,4)}, {v(t[4])}, {srd(SRD_O)}, {s(sT1)} offen offset:{dd*128} sc1")
    a("s_waitcnt lgkmcnt(0)")
    store_flag(a, t[0], sF2)
    a("s_branch L_p3cons")
    va.release(mark2)
    a.label("L_gate")
    a("s_barrier")
    xr = [va(4, 4) for _ in range(16)]
    gw = va(4, 4)
    gu = va(8)
    sm = [va() for _ in range(16)]
    res = va()
    a(f"s_lshl_b32 {s(sT0)}, {s(sRB2)}, 7")
    a(f"s_lshl_b32 {s(sT1)}, {s(sW)}, 5")
    a(f"s_add_u32 s16, {s(sT0)}, {s(sT1)}")
    a(f"s_lshl_b32 {s(sT1)}, s16, 10")
    a(f"v_lshlrev_b32 {v(t[0])}, 4, {v(vL)}")
    a(f"v_add_u32 {v(t[1])}, {s(sT1)}, {v(t[0])}")
    a(f"global_load_dwordx4 {v(gw,4)}, {v(t[0])}, {sp(P_GW)}")
    a(f"v_mov_b32 {v(res)}, 0")
    for rnd in range(2):
        for i in range(16):
            if i % 4 == 0:
                a(f"s_mov_b32 {s(sT2)}, {(16*rnd+i)*1024}")
            a(f"buffer_load_dwordx4 {v(xr[i],4)}, {v(t[1])}, {srd(SRD_X)}, {s(sT2)} offen offset:{(i%4)*1024}")
        if rnd == 0:
            a("s_waitcnt vmcnt(16)")
            for i in range(4):
                a(f"v_lshlrev_b32 {v(gu+2*i)}, 16, {v(gw+i)}")
                a(f"v_and_b32 {v(gu+2*i+1)}, 0xffff0000, {v(gw+i)}")
        for i in range(16):
            a(f"s_waitcnt vmcnt({15-i})")
            for e in range(4):
                a(f"v_lshlrev_b32 {v(t[2])}, 16, {v(xr[i]+e)}")
                a(f"v_and_b32 {v(t[3])}, 0xffff0000, {v(xr[i]+e)}")
                a(f"v_mul_f32 {v(t[2])}, {v(t[2])}, {v(gu+2*e)}")
                a(f"v_mul_f32 {v(t[3])}, {v(t[3])}, {v(gu+2*e+1)}")
                a(f"v_cvt_pk_bf16_f32 {v(t[2])}, {v(t[2])}, {v(t[3])}")
                a(f"v_and_b32 {v(t[3])}, 0xffff0000, {v(t[2])}")
                a(f"v_lshlrev_b32 {v(t[2])}, 16, {v(t[2])}")
                if e == 0:
                    a(f"v_add_f32 {v(sm[i])}, {v(t[2])}, {v(t[3])}")
                else:
                    a(f"v_add_f32 {v(sm[i])}, {v(sm[i])}, {v(t[2])}")
                    a(f"v_add_f32 {v(sm[i])}, {v(sm[i])}, {v(t[3])}")
        for sh in (8, 4, 2, 1):
            for i in range(16):
                a(f"v_add_f32_dpp {v(sm[i])}, {v(sm[i])}, {v(sm[i])} row_ror:{sh} row_mask:0xf bank_mask:0xf")
        for sw in ("v_permlane16_swap_b32", "v_permlane32_swap_b32"):
            for i in range(16):
                a(f"v_mov_b32 {v(xr[0]+i)}, {v(sm[i])}")
            a("s_nop 0")
            for i in range(16):
                a(f"{sw} {v(sm[i])}, {v(xr[0]+i)}")
            for i in range(16):
                a(f"v_add_f32 {v(sm[i])}, {v(sm[i])}, {v(xr[0]+i)}")
        for i in range(16):
            a(f"v_cmp_eq_u32 vcc, {16*rnd+i}, {v(vL)}")
            a("s_nop 1")
            a(f"v_cndmask_b32 {v(res)}, {v(res)}, {v(sm[i])}, vcc")
    g2 = gw
    a(f"v_cvt_pk_bf16_f32 {v(t[2])}, {v(res)}, {v(res)}")
    a(f"v_lshlrev_b32 {v(t[2])}, 16, {v(t[2])}")
    a(f"v_mul_f32 {v(t[2])}, {hx(f2u(-LOG2E))}, {v(t[2])}")
    a(f"v_exp_f32 {v(t[2])}, {v(t[2])}")
    a("s_nop 0")
    a(f"v_add_f32 {v(t[2])}, 1.0, {v(t[2])}")
    a(f"v_rcp_f32 {v(t[2])}, {v(t[2])}")
    a("s_nop 0")
    a(f"v_cvt_pk_bf16_f32 {v(t[2])}, {v(t[2])}, {v(t[2])}")
    a(f"v_lshlrev_b32 {v(g2)}, 16, {v(t[2])}")
    a(f"v_sub_f32 {v(t[2])}, 1.0, {v(g2)}")
    a(f"v_cvt_pk_bf16_f32 {v(t[2])}, {v(t[2])}, {v(t[2])}")
    a(f"v_lshlrev_b32 {v(g2+1)}, 16, {v(t[2])}")
    a(f"s_lshl_b32 {s(sT0)}, s16, 3")
    a(f"s_add_u32 {s(sT0)}, {s(sT0)}, {hx(G_OFF)}")
    a(f"v_lshlrev_b32 {v(t[0])}, 3, {v(vL)}")
    a("s_mov_b64 exec, 0xffffffff")
    a(f"buffer_store_dwordx2 {v(g2,2)}, {v(t[0])}, {srd(SRD_WS)}, {s(sT0)} offen sc1")
    a("s_mov_b64 exec, -1")
    store_flag(a, t[2], sF2)

    va.release(mark2)
    a.label("L_p3cons")
    p3_a = len(a.lines)
    av = va(16, 4)
    g2 = va(2)
    vO = va()
    a(f"s_lshl_b32 {s(sT0)}, {s(sRB2)}, 2")
    a(f"s_lshl_b32 {s(sT1)}, {s(sTH3)}, 1")
    a(f"s_add_u32 {s(sT0)}, {s(sT0)}, {s(sT1)}")
    a(f"s_add_u32 {s(sT0)}, {s(sT0)}, {s(sHi)}")
    a(f"s_lshl_b32 {s(sT2)}, {s(sT0)}, 5")
    a(f"v_add_u32 {v(t[2])}, {s(sT2)}, {v(vn5)}")
    a(f"s_lshl_b32 {s(sT0)}, {s(sT0)}, 16")
    a(f"s_lshl_b32 {s(sT1)}, {s(sDT)}, 1")
    a(f"s_add_u32 {s(sT1)}, {s(sT1)}, {s(sLo)}")
    a(f"s_lshl_b32 {s(sT1)}, {s(sT1)}, 7")
    a(f"s_add_u32 {s(sT0)}, {s(sT0)}, {s(sT1)}")
    a(f"v_lshlrev_b32 {v(t[5])}, 3, {v(t[2])}")
    a(f"v_lshl_add_u32 {v(vO)}, {v(vh)}, 4, {s(sT1)}")
    a(f"v_lshl_add_u32 {v(vO)}, {v(t[2])}, 11, {v(vO)}")
    a(f"v_lshrrev_b32 {v(t[4])}, 3, {v(vL)}")
    a(f"v_and_b32 {v(t[3])}, 7, {v(vL)}")
    a(f"v_lshlrev_b32 {v(t[3])}, 4, {v(t[3])}")
    a(f"v_lshl_add_u32 {v(t[4])}, {v(t[4])}, 11, {v(t[3])}")
    a(f"s_mov_b32 {s(sT2)}, {hx(G_OFF)}")
    make_srd(a, SRD_O, P_OUT, 2048 * 2048)
    for j in range(1, 4):
        a(f"s_add_u32 s{15+j}, {s(sT0)}, {j*16384}")
    x, pa, pb = va(), va(), va()
    a(f"v_and_b32 {v(t[0])}, 3, {v(vL)}")
    a(f"v_lshl_add_u32 {v(x)}, {v(t[0])}, 3, {v(vTr)}")
    a(f"v_add_u32 {v(x)}, {90112}, {v(x)}")
    a(f"v_mov_b32 {v(pa)}, {v(x)}")
    a(f"s_lshl_b32 {s(sT1)}, {s(sHi)}, 12")
    a(f"v_lshl_add_u32 {v(pb)}, {v(vL)}, 4, {s(sT1)}")
    fA = [[va(4, 4) for ss in range(4)] for b in range(2)]
    fB = [[va(4, 4) for ss in range(4)] for b in range(2)]
    acc = va(16, 4)
    zero_regs(a, acc, 16)
    a(f"s_mov_b32 {s(sRa)}, 0")
    a(f"s_movk_i32 {s(sRb)}, 0x2000")
    a(f"s_mov_b32 {s(sIt)}, 0")
    vA_, vG_ = va(), va()
    a(f"v_mov_b32 {v(vA_)}, {v(t[4])}")
    a(f"v_mov_b32 {v(vG_)}, {v(t[5])}")
    a(f"s_mov_b32 s19, {s(sT0)}")
    a(f"s_mov_b32 s26, {hx(G_OFF)}")
    wave0_poll(a, t, vL, 'b')
    a("s_barrier")
    for j in range(4):
        a(f"buffer_load_dwordx4 {v(av+4*j,4)}, {v(vA_)}, {srd(SRD_O)}, {'s19' if j == 0 else f's{15+j}'} offen sc1")
    a(f"buffer_load_dwordx2 {v(g2,2)}, {v(vG_)}, {srd(SRD_WS)}, s26 offen sc1")

    def reads(b):
        out = []
        for ss in range(4):
            out.append(f"ds_read_b64_tr_b16 {v(fA[b][ss],2)}, {v(pa)} offset:{ss*2048}")
            out.append(f"ds_read_b64_tr_b16 {v(fA[b][ss]+2,2)}, {v(pa)} offset:{ss*2048+512}")
            out.append(f"ds_read_b128 {v(fB[b][ss],4)}, {v(pb)} offset:{ss*1024}")
        return out + [f"s_addk_i32 {s(sRa)}, 0x2000", f"s_cmp_eq_u32 {s(sRa)}, {9*8192}", f"s_cselect_b32 {s(sRa)}, 0, {s(sRa)}",
                      f"v_add_u32 {v(pb)}, {s(sRb)}, {v(pb)}", f"v_add_u32 {v(pa)}, {s(sRa)}, {v(x)}"]

    def mfmas(b, n=4):
        return [f"v_mfma_f32_32x32x16_bf16 {v(acc,16)}, {v(fA[b][ss],4)}, {v(fB[b][ss],4)}, {v(acc,16)}" for ss in range(n)]
    a("s_barrier")
    stamp(a, 6)
    for r in reads(0):
        a(r)
    a.label("L_bloop")
    for b in range(2):
        a("s_waitcnt lgkmcnt(0)")
        a("s_barrier")
        emit_sub(a, mfmas(b), reads(1 - b), 5)
    a(f"s_addk_i32 {s(sIt)}, 1")
    a(f"s_cmp_lt_u32 {s(sIt)}, 5")
    a("s_cbranch_scc1 L_bloop")
    a("s_waitcnt lgkmcnt(0)")
    for m in mfmas(0, 3):
        a(m)
    a("s_waitcnt vmcnt(0)")
    for i in range(8):
        a(f"v_pk_mul_f32 {v(av+2*i,2)}, {v(av+2*i,2)}, {v(g2,2)} op_sel_hi:[1,0]")
    a("s_nop 2")
    for j in range(4):
        for e in range(2):
            r = 4 * j + 2 * e
            a(f"v_pk_fma_f32 {v(av+r,2)}, {v(acc+r,2)}, {v(g2,2)}, {v(av+r,2)} op_sel:[0,1,0] op_sel_hi:[1,1,1]")
        a(f"buffer_store_dwordx4 {v(av+4*j,4)}, {v(vO)}, {srd(SRD_O)}, 0 offen offset:{j*32}")
    endpgm(a)
    return va.hi


HEADER = open("cdna_kernels/" + NAME + ".s.ref").read().split("; Override launch geometry")[0]


def build(as_list=False):
    a = Asm()
    hi = gen(a)
    e1 = check_hazards(a.lines)
    e2 = check_waits(a.lines)
    print(f"vgprs {hi}, {len(a.lines)} lines, hazards {len(e1)}, waits {len(e2)}", file=sys.stderr)
    out = HEADER
    if as_list:
        out += f"; @launch kernel={KNAME} grid=(256,1,1) block=(512,1,1) lds=163840\n"
    else:
        out += "; @launch grid=(256,1,1) block=(512,1,1) lds=163840\n"
    out += '.amdgcn_target "amdgcn-amd-amdhsa--gfx950"\n.text\n'
    out += f".globl {KNAME}\n.p2align 8\n.type {KNAME},@function\n" + a.text()
    out += f""".section .rodata,"a"
.p2align 6
.amdhsa_kernel {KNAME}
  .amdhsa_next_free_vgpr 256
  .amdhsa_next_free_sgpr 102
  .amdhsa_accum_offset 256
  .amdhsa_group_segment_fixed_size 0
  .amdhsa_kernarg_size 144
  .amdhsa_user_sgpr_count 2
  .amdhsa_user_sgpr_kernarg_segment_ptr 1
  .amdhsa_system_sgpr_workgroup_id_x 1
.end_amdhsa_kernel
"""
    return out


if __name__ == "__main__":
    for o in sys.argv[2:]:
        if "=" in o:
            k, val = o.split("=", 1)
            OPT[k] = type(OPT[k])(val) if not isinstance(OPT[k], bool) else val == "1"
        elif o in OPT:
            OPT[o] = True
    dst = sys.argv[1] if len(sys.argv) > 1 else "cdna_kernels/" + NAME + ".s"
    txt = build(as_list="list" in sys.argv)
    if OPT["x"] == "noglc":
        txt = txt.replace(", 0 glc", ", 0")
    if OPT["x"] == "plainst":
        import re
        txt = re.sub(r"(buffer_store_dwordx4 .*offset:\d+) sc1", r"\1", txt)
    if OPT["x"] == "slowpoll":
        txt = txt.replace("s_sleep 6", "s_sleep 127")
    open(dst, "w").write(txt)
```

```python
import math
import struct
import sys
from asmlib import Asm, Alloc, v, s, check_hazards, check_waits

NAME = "gated_mix__ssm_conv_s5__mixer_gmlp__prompt"
KNAME = NAME + "_kernel"

Z1_OFF = 0
Z1_STRIDE = 1408
Z2N_OFF = 0x300000
H_OFF = 0x600000
P_OFF = 0xA00000
A_OFF = 0xD00000
G_OFF = 0x1100000
SC_OFF = 0x1110000
LN_OFF = 0x1180000
FZ_OFF = 0x1130000
FH_OFF = 0x1134000
F1_OFF = 0x1140000
F2_OFF = 0x11C0000
TS_OFF = 0x1150000
WS_SIZE = 0x1200000

P_X, P_LRE, P_LIM, P_BRE, P_BIM, P_CRE, P_CIM, P_LDT = 16, 18, 20, 22, 24, 26, 28, 30
P_DSK, P_BX, P_WIN, P_WSP, P_BSP, P_WOUT, P_GW, P_OUT = 32, 34, 36, 38, 40, 42, 44, 46
P_DBG, P_WS = 48, 50
LOG2E = 1.4426950408889634

sW, sRB1, sCol, sIsZ, sRB2, sRole, sDT, sTH3 = 3, 4, 5, 6, 7, 8, 9, 10
sT0, sT1, sT2, sT3, sT4 = 11, 12, 13, 14, 15
SRD_X, SRD_B, SRD_WS, SRD_PA, SRD_PB, SRD_O = 52, 56, 60, 64, 68, 72
sN = 76
sK1, sK2, sMask2 = 78, 79, 80
sE = [None, 81, 82, 83]
sM0, sCnt = 84, 85
S_TS = 86

OPT = dict(stamps=False, spin=0x40000, prof="all", x="", sleep=2, dsc=" sc1", ntt="", pf="1cw", wlate=False, dbgout=False, uearly=False, l3="cwo", q9=21, qz=5.0, gw=7, gz=6, pre1=0, pre2=0, rz=3, fz=2, early=13, cpf=True)


def f2u(x):
    return struct.unpack("<I", struct.pack("<f", x))[0]


def hx(x):
    return hex(x & 0xFFFFFFFF)


def srd(r):
    return f"s[{r}:{r+3}]"


def sp(r):
    return f"s[{r}:{r+1}]"


PROF = {
    "all": {0: 0, 1: 1, 2: 2, 3: 3, 4: 4, 5: 5, 6: 6, 7: 7},
    "cnt": {0: 0, 7: 7},
    "h2": {0: 0, 5: 1, "e": 2, "f": 3, "g": 4, "h": 5, 6: 6, 7: 7},
    "h1": {0: 0, "b": 1, "c": 2, "i": 3, "d": 4, "j": 5, "k": 6, 4: 7},
    "clk": {0: 0, 4: 4, 5: 5, 7: 7},
    "clk1": {0: 0, 1: 1, 2: 2, 7: 7},
    "p1": {0: 0, 1: 1, 2: 2, "a": 3, "b": 4, "c": 5, "d": 6, 7: 7},
}


def stamp(a, i):
    if OPT["stamps"]:
        j = PROF[OPT["prof"]].get(i)
        if j is not None:
            a(f"s_memrealtime s[{S_TS+2*j}:{S_TS+2*j+1}]")
        if OPT["prof"] == "clk" and i in (4, 5):
            a(f"s_memtime s[{S_TS+2*(i-3)}:{S_TS+2*(i-3)+1}]")
        if OPT["prof"] == "clk1" and i in (1, 2):
            a(f"s_memtime s[{S_TS+2*(i+3)}:{S_TS+2*(i+3)+1}]")


def endpgm(a, cons=False):
    if OPT["stamps"] and OPT["dbgout"]:
        a("s_waitcnt vmcnt(0)")
        stamp(a, 7)
        if cons:
            sk = a.newlabel("nodbg")
            a("s_cmp_lg_u32 s3, 0")
            a(f"s_cbranch_scc1 {sk}")
            a("s_mov_b64 exec, 1")
            a("s_waitcnt lgkmcnt(0)")
            a(f"s_not_b32 s{S_TS}, s{S_TS}")
            a("v_mov_b32 v2, 0")
            for i in range(8):
                a(f"v_mov_b32 v3, s{S_TS+2*i}")
                a(f"global_atomic_umax v2, v3, s[48:49] offset:{16+4*i}")
            a.label(sk)
        a("s_endpgm")
        return
    if OPT["stamps"]:
        a("s_waitcnt vmcnt(0)")
        if OPT["prof"] != "h1":
            stamp(a, 7)
        a("s_mov_b64 exec, -1")
        a("v_lshrrev_b32 v0, 6, v0")
        a("s_lshl_b32 s3, s2, 3")
        a("v_add_u32 v0, s3, v0")
        a("v_lshlrev_b32 v0, 6, v0")
        a(f"s_mov_b32 s3, {hx(TS_OFF)}")
        a("s_waitcnt lgkmcnt(0)")
        for i in range(0, 8, 2):
            for e in range(4):
                a(f"v_mov_b32 v{4+e}, s{S_TS+2*i+e}")
            a(f"buffer_store_dwordx4 v[4:7], v0, {srd(SRD_WS)}, s3 offen offset:{i*8}")
            a("s_nop 1")
    a("s_endpgm")


def make_srd(a, dst, ptr, size):
    a(f"s_mov_b32 s{dst}, s{ptr}")
    a(f"s_and_b32 s{dst+1}, s{ptr+1}, 0xffff")
    a(f"s_mov_b32 s{dst+2}, {hx(size)}")
    a(f"s_mov_b32 s{dst+3}, 0x20000")


class LdsAddr:
    def __init__(self, a, va, base_reg, max_const, min_const=0):
        self.r0 = min_const // 65536
        self.regs = {}
        for r in range(self.r0, max_const // 65536 + 1):
            if r == 0:
                self.regs[r] = base_reg
            else:
                x = va()
                a(f"v_add_u32 {v(x)}, {hx(65536*r)}, {v(base_reg)}")
                self.regs[r] = x

    def at(self, const):
        r = const // 65536
        return f"{v(self.regs[r])} offset:{const - r*65536}"


class VmQ:
    def __init__(self, a, pre=0):
        self.a = a
        self.issued = pre
        self.done = 0

    def issue(self, text):
        self.a(text)
        self.issued += 1
        return self.issued

    def need(self, tok):
        if tok <= self.done:
            return
        n = min(63, self.issued - tok)
        self.a(f"s_waitcnt vmcnt({n})")
        self.done = self.issued - n


def cmul(a, d, x, y):
    a(f"v_mul_f32 {v(d)}, {v(x)}, {v(y)}")
    a(f"v_mul_f32 {v(d+1)}, {v(x)}, {v(y+1)}")
    a(f"v_fma_f32 {v(d)}, -{v(x+1)}, {v(y+1)}, {v(d)}")
    a(f"v_fma_f32 {v(d+1)}, {v(x+1)}, {v(y)}, {v(d+1)}")


def cfma(a, d, x, y, c):
    a(f"v_fma_f32 {v(d)}, {v(x)}, {v(y)}, {v(c)}")
    a(f"v_fma_f32 {v(d+1)}, {v(x)}, {v(y+1)}, {v(c+1)}")
    a(f"v_fma_f32 {v(d)}, -{v(x+1)}, {v(y+1)}, {v(d)}")
    a(f"v_fma_f32 {v(d+1)}, {v(x+1)}, {v(y)}, {v(d+1)}")


def cpow(a, d, n_f, la, lb, t):
    a(f"v_mul_f32 {v(t)}, {v(n_f)}, {v(la)}")
    a(f"v_mul_f32 {v(d+1)}, {v(n_f)}, {v(lb)}")
    a(f"v_exp_f32 {v(t)}, {v(t)}")
    a(f"v_fract_f32 {v(d+1)}, {v(d+1)}")
    a(f"v_cos_f32 {v(d)}, {v(d+1)}")
    a(f"v_sin_f32 {v(d+1)}, {v(d+1)}")
    a(f"v_mul_f32 {v(d)}, {v(d)}, {v(t)}")
    a(f"v_mul_f32 {v(d+1)}, {v(d+1)}, {v(t)}")


def pk_cfma(a, dre, dim, L, sre, sim, ure, uim):
    a(f"v_pk_fma_f32 {v(dre,2)}, {v(L,2)}, {v(sre,2)}, {v(ure,2)} op_sel:[0,0,0] op_sel_hi:[0,1,1]")
    a(f"v_pk_fma_f32 {v(dim,2)}, {v(L,2)}, {v(sim,2)}, {v(uim,2)} op_sel:[0,0,0] op_sel_hi:[0,1,1]")
    a(f"v_pk_fma_f32 {v(dre,2)}, {v(L,2)}, {v(sim,2)}, {v(dre,2)} op_sel:[1,0,0] op_sel_hi:[1,1,1] neg_lo:[1,0,0] neg_hi:[1,0,0]")
    a(f"v_pk_fma_f32 {v(dim,2)}, {v(L,2)}, {v(sre,2)}, {v(dim,2)} op_sel:[1,0,0] op_sel_hi:[1,1,1]")


def gelu_pk(pairs, temps, K, ONE):
    out = []
    n = len(temps)
    for i in range(0, len(pairs), n):
        g = pairs[i:i + n]
        tt = temps[:len(g)]
        out += [f"v_pk_mul_f32 {v(t,2)}, {v(x,2)}, {v(x,2)}" for x, t in zip(g, tt)]
        out += [f"v_pk_fma_f32 {v(t,2)}, {v(t,2)}, {v(K,2)}, {v(K,2)} op_sel:[0,0,1] op_sel_hi:[1,0,1]" for t in tt]
        out += [f"v_pk_mul_f32 {v(t,2)}, {v(t,2)}, {v(x,2)}" for x, t in zip(g, tt)]
        for t in tt:
            out += [f"v_exp_f32 {v(t)}, {v(t)}", f"v_exp_f32 {v(t+1)}, {v(t+1)}"]
        if len(tt) == 1:
            out.append("s_nop 0")
        out += [f"v_pk_add_f32 {v(t,2)}, {v(t,2)}, {v(ONE,2)} op_sel_hi:[1,0]" for t in tt]
        for t in tt:
            out += [f"v_rcp_f32 {v(t)}, {v(t)}", f"v_rcp_f32 {v(t+1)}, {v(t+1)}"]
        if len(tt) == 1:
            out.append("s_nop 0")
        out += [f"v_pk_mul_f32 {v(x,2)}, {v(x,2)}, {v(t,2)}" for x, t in zip(g, tt)]
    return out


def gelu_consts(a, K, ONE):
    k = 2.0 * math.sqrt(2.0 / math.pi)
    a(f"v_mov_b32 {v(K)}, {hx(f2u(-k*LOG2E*0.044715))}")
    a(f"v_mov_b32 {v(K+1)}, {hx(f2u(-k*LOG2E))}")
    a(f"v_mov_b32 {v(ONE)}, 1.0")
    a(f"v_mov_b32 {v(ONE+1)}, 1.0")


def poll(a, loads, tags, notneed, first_issued=False, sleep=1, cslot=None):
    PL, PD, PC = a.newlabel("poll"), a.newlabel("polled"), a.newlabel("pollchk")
    a(f"s_mov_b32 {s(sCnt)}, {hx(OPT['spin'])}")
    if first_issued:
        a(f"s_branch {PC}")
    a.label(PL)
    for l in loads:
        a(l)
    a.label(PC)
    a(f"s_mov_b64 {sp(sT3)}, -1")
    a("s_waitcnt vmcnt(0)")
    for lo, hi, li in tags:
        a(f"v_cmp_eq_u32 vcc, {s(sN)}, {v(lo)}")
        a(f"v_cmp_eq_u32 {sp(sT1)}, {s(sN+1)}, {v(hi)}")
        a(f"s_and_b64 vcc, vcc, {sp(sT1)}")
        if notneed[li] is not None:
            a(f"s_or_b64 vcc, vcc, {sp(notneed[li])}")
        a(f"s_and_b64 {sp(sT3)}, {sp(sT3)}, vcc")
    a(f"s_cmp_eq_u64 {sp(sT3)}, -1")
    a(f"s_cbranch_scc1 {PD}")
    a(f"s_sub_u32 {s(sCnt)}, {s(sCnt)}, 1")
    a(f"s_cbranch_scc1 {PD}")
    a(f"s_sleep {sleep}")
    a(f"s_branch {PL}")
    a.label(PD)
    if OPT["stamps"] and OPT["prof"] == "cnt" and cslot is not None:
        a(f"s_sub_u32 s{S_TS+2*cslot}, {hx(OPT['spin'])}, {s(sCnt)}")
        a(f"s_mov_b32 s{S_TS+2*cslot+1}, 0")


def emit_sub(a, ms, rd, rpm, fl=(), fpm=2, tail=()):
    fl = [list(g) if isinstance(g, (list, tuple)) else [g] for g in fl]
    rd = list(rd)
    tail = list(tail)
    for m in ms:
        a(m)
        n = rpm
        while n > 0 and rd:
            a(rd.pop(0))
            n -= 1
        if not rd:
            while n > 0 and tail:
                a(tail.pop(0))
                n -= 1
        n = fpm
        while n > 0 and fl:
            g = fl.pop(0)
            for x in g:
                a(x)
            n -= len(g)
    for x in rd + tail:
        a(x)
    for g in fl:
        for x in g:
            a(x)


def store_flag(a, vtmp, sOffExprReg, ctr=None, wait="vmcnt(0)"):
    a(f"v_mov_b32 {v(vtmp)}, {s(sN)}")
    a(f"v_mov_b32 {v(vtmp+1)}, {s(sN+1)}")
    if ctr is not None:
        sk = a.newlabel("notlast")
        a(f"v_mov_b32 {v(vtmp+2)}, {hx(ctr)}")
        a(f"v_mov_b32 {v(vtmp+3)}, 1")
        a("s_mov_b64 exec, 1")
        a(f"s_waitcnt {wait}")
        a(f"ds_add_rtn_u32 {v(vtmp+3)}, {v(vtmp+2)}, {v(vtmp+3)}")
        a("s_mov_b64 exec, 0xffff")
        a(f"v_lshlrev_b32 {v(vtmp+2)}, 3, v1")
        a("s_waitcnt lgkmcnt(0)")
        a(f"v_readfirstlane_b32 {s(sT4)}, {v(vtmp+3)}")
        a(f"s_cmp_lg_u32 {s(sT4)}, 3")
        a(f"s_cbranch_scc1 {sk}")
        a(f"buffer_store_dwordx2 {v(vtmp,2)}, {v(vtmp+2)}, {srd(SRD_WS)}, {s(sOffExprReg)} offen sc1")
        a.label(sk)
    else:
        a(f"v_lshlrev_b32 {v(vtmp+2)}, 3, v1")
        a("s_mov_b64 exec, 0xffff")
        a("s_waitcnt vmcnt(0)")
        a(f"buffer_store_dwordx2 {v(vtmp,2)}, {v(vtmp+2)}, {srd(SRD_WS)}, {s(sOffExprReg)} offen sc1")
    a("s_mov_b64 exec, -1")


def zero_ctr(a, t0, t1, addr):
    a(f"v_mov_b32 {v(t0)}, {hx(addr)}")
    a(f"v_mov_b32 {v(t1)}, 0")
    a(f"ds_write_b32 {v(t0)}, {v(t1)}")


U_CTR = 131072
Z_CTR = 145408
Z_STAGE, U_STAGE, P1_R = 28672, 32768, 5
YC_R, YH_R = 4, 6
sRB = sRB1
sHalf, sSlot = 81, 82


def p1slot(z, k):
    return (k % P1_R) * Z_STAGE if z else ((k + 2) % P1_R) * U_STAGE


def uloop(a, nsteps, nsub, reads, mfmas, rpm, hooks=None, fillers=None, fpm=2, end_barrier=True):
    hooks = hooks or {}
    fillers = fillers or {}
    a("s_barrier")
    if 'start' in hooks:
        hooks['start']()
    for r in reads(0, 0):
        a(r)
    seq = [(k, h) for k in range(nsteps) for h in range(nsub)]
    for idx, (k, h) in enumerate(seq):
        a("s_waitcnt lgkmcnt(0)")
        if h == nsub - 1 and (k + 1 < nsteps or end_barrier):
            a("s_barrier")
        if (k, h) in hooks:
            hooks[(k, h)]()
        rd = reads(*seq[idx + 1]) if idx + 1 < len(seq) else []
        emit_sub(a, mfmas(k, h), rd, rpm, fl=fillers.get((k, h), ()), fpm=fpm)
        if ('post', k, h) in hooks:
            hooks[('post', k, h)]()


def spread(items, slots):
    out = {sl: [] for sl in slots}
    n = len(items)
    for i, it in enumerate(items):
        out[slots[i * len(slots) // n]].append(it)
    return out


def flag_poll(a, fl, pl, mask, issued=False):
    PL, PD, PC = a.newlabel("fpoll"), a.newlabel("fdone"), a.newlabel("fchk")
    a(f"s_mov_b32 {s(sCnt)}, {hx(OPT['spin'])}")
    a(f"s_mov_b64 exec, {mask}")
    if issued:
        a(f"s_branch {PC}")
    a.label(PL)
    a(f"buffer_load_dwordx2 {v(pl,2)}, {v(fl)}, {srd(SRD_WS)}, 0 offen sc1")
    a.label(PC)
    a("s_waitcnt vmcnt(0)")
    a(f"v_cmp_ne_u64 vcc, {sp(sN)}, {v(pl,2)}")
    a(f"s_and_b64 exec, exec, vcc")
    a(f"s_cbranch_execz {PD}")
    a(f"s_sub_u32 {s(sCnt)}, {s(sCnt)}, 1")
    a(f"s_cbranch_scc1 {PD}")
    a(f"s_sleep {OPT['sleep']}")
    a(f"s_branch {PL}")
    a.label(PD)
    a("s_mov_b64 exec, -1")


def s_unit0(a, dst, zt, tmp):
    a(f"s_mul_i32 {s(dst)}, {s(zt)}, 5")
    a(f"s_min_u32 {s(tmp)}, {s(zt)}, 3")
    a(f"s_add_u32 {s(dst)}, {s(dst)}, {s(tmp)}")


def gen(a):
    a.label(KNAME)
    a("s_cmp_ge_u32 s2, 256")
    a("s_cbranch_scc1 L_end")
    if OPT["stamps"]:
        for i in range(8):
            a(f"s_mov_b64 s[{S_TS+2*i}:{S_TS+2*i+1}], 0")
    stamp(a, 0)
    a("s_load_dwordx16 s[16:31], s[0:1], 0")
    a("s_load_dwordx16 s[32:47], s[0:1], 64")
    a("s_load_dwordx4 s[48:51], s[0:1], 128")
    a(f"s_memrealtime {sp(sN)}")
    vL = 1
    a(f"v_lshrrev_b32 v2, 6, v0")
    a(f"v_and_b32 {v(vL)}, 63, v0")
    a(f"v_readfirstlane_b32 {s(sW)}, v2")
    a(f"s_and_b32 {s(sHalf)}, s2, 1")
    a(f"s_bfe_u32 {s(sRB)}, s2, 0x20001")
    a(f"s_bfe_u32 {s(sT0)}, s2, 0x20003")
    a(f"s_lshl2_add_u32 {s(sRB)}, {s(sRB)}, {s(sT0)}")
    a(f"s_lshr_b32 {s(sSlot)}, s2, 5")
    a(f"s_lshr_b32 {s(sIsZ)}, {s(sSlot)}, 2")
    a(f"s_and_b32 {s(sCol)}, {s(sSlot)}, 3")
    a(f"s_lshl2_add_u32 {s(sCol)}, {s(sHalf)}, {s(sCol)}")
    a(f"s_lshl1_add_u32 {s(sK1)}, {s(sRB)}, {s(sCol)}")
    a(f"s_lshl2_add_u32 {s(sK1)}, {s(sIsZ)}, {s(sK1)}")
    a(f"s_mul_i32 {s(sRole)}, {s(sHalf)}, 6")
    a(f"s_add_u32 {s(sRole)}, {s(sRole)}, {s(sSlot)}")
    a(f"s_cmp_eq_u32 {s(sRole)}, 11")
    a(f"s_cselect_b32 {s(sRole)}, 15, {s(sRole)}")
    a(f"s_lshl1_add_u32 {s(sT0)}, {s(sHalf)}, {s(sSlot)}")
    a(f"s_add_u32 {s(sT0)}, {s(sT0)}, 5")
    a(f"s_cmp_ge_u32 {s(sSlot)}, 6")
    a(f"s_cselect_b32 {s(sRole)}, {s(sT0)}, {s(sRole)}")
    a(f"s_and_b32 {s(sTH3)}, {s(sSlot)}, 1")
    a(f"s_lshr_b32 {s(sDT)}, {s(sSlot)}, 1")
    a(f"s_lshl2_add_u32 {s(sDT)}, {s(sHalf)}, {s(sDT)}")
    a(f"s_cmp_lt_u32 {s(sW)}, 4")
    a("s_cbranch_scc1 L_cons")
    gen_loader(a, vL)
    a.label("L_cons")
    hi_c = gen_consumer(a, vL)
    a.label("L_end")
    a("s_endpgm")
    return hi_c


def gen_loader(a, vL):
    GW_R, GZ_R = OPT["gw"], OPT["gz"]
    va = Alloc(2, 32, 'v')
    t = [va() for _ in range(4)]
    vX = [va() for _ in range(4)]
    vB = [va() for _ in range(4)]
    vPg = [va() for _ in range(4)]
    vLin, vOg, vOg1 = [va() for _ in range(3)]
    sLW = sW
    sKa = sT3
    sKx, sKw, sKp, sKd, sM1 = 20, 21, 22, 23, 30
    a(f"s_sub_u32 {s(sLW)}, {s(sW)}, 4")
    a(f"s_lshl_b32 {s(sM0)}, {s(sLW)}, 12")
    vCh = t[3]
    a(f"v_and_b32 {v(t[0])}, 7, {v(vL)}")
    a(f"v_lshrrev_b32 {v(t[1])}, 4, {v(vL)}")
    a(f"v_xor_b32 {v(vCh)}, {v(t[0])}, {v(t[1])}")
    a(f"v_lshlrev_b32 {v(vCh)}, 4, {v(vCh)}")
    a(f"v_lshrrev_b32 {v(t[2])}, 3, {v(vL)}")
    a(f"s_cmp_eq_u32 {s(sIsZ)}, 1")
    a("s_cbranch_scc1 L_zload")

    def rows4(dst, rowreg, sh, step=8):
        a(f"v_lshl_add_u32 {v(dst[0])}, {v(rowreg)}, {sh}, {v(vCh)}")
        a(f"v_xor_b32 {v(dst[1])}, 64, {v(dst[0])}")
        a(f"v_add_u32 {v(dst[2])}, {((2*step)<<sh)-2048}, {v(dst[0])}")
        a(f"v_add_u32 {v(dst[3])}, {((3*step)<<sh)-3072}, {v(dst[1])}")
        a(f"v_add_u32 {v(dst[1])}, {(step<<sh)-1024}, {v(dst[1])}")

    def setup_rest():
        make_srd(a, SRD_WS, P_WS, WS_SIZE)
        make_srd(a, SRD_O, P_WOUT, 688 * 1024)
        make_srd(a, SRD_PB, P_CIM, 512 * 1024)
        ly, ld = a.newlabel("ysetup"), a.newlabel("setupdone")
        a(f"v_lshrrev_b32 {v(t[0])}, 3, {v(vL)}")
        a(f"s_lshl_b32 {s(sT0)}, {s(sLW)}, 5")
        a(f"v_add_u32 {v(t[0])}, {s(sT0)}, {v(t[0])}")
        a(f"s_cmp_ge_u32 {s(sSlot)}, 6")
        a(f"s_cbranch_scc1 {ly}")
        make_srd(a, SRD_PA, P_WSP, 2048 * 4096)
        a(f"s_lshl_b32 {s(sT0)}, {s(sRB)}, 7")
        a(f"v_add_u32 {v(t[0])}, {s(sT0)}, {v(t[0])}")
        rows4(vPg, t[0], 12)
        a(f"s_movk_i32 {s(sMask2)}, {31*128}")
        a(f"s_mul_i32 {s(sKp)}, {s(sSlot)}, {5*128}")
        a(f"s_lshl_b32 {s(sT0)}, {s(sRole)}, 18")
        a(f"s_lshl_b32 {s(sT1)}, {s(sLW)}, 11")
        a(f"s_add_u32 {s(sT0)}, {s(sT0)}, {s(sT1)}")
        a(f"s_add_u32 {s(sT0)}, {s(sT0)}, {hx(Z2N_OFF)}")
        a(f"v_lshl_add_u32 {v(vLin)}, {v(vL)}, 4, {s(sT0)}")
        a(f"s_branch {ld}")
        a.label(ly)
        make_srd(a, SRD_PA, P_CRE, 512 * 1024)
        a(f"s_sub_u32 {s(sT1)}, {s(sRole)}, 11")
        a(f"s_lshl_b32 {s(sT0)}, {s(sT1)}, 7")
        a(f"v_add_u32 {v(t[0])}, {s(sT0)}, {v(t[0])}")
        rows4(vPg, t[0], 10)
        a(f"s_movk_i32 {s(sMask2)}, {7*128}")
        a(f"s_lshl_b32 {s(sKp)}, {s(sTH3)}, 9")
        a(f"s_lshl_b32 {s(sT0)}, {s(sRB)}, 18")
        a(f"s_add_u32 {s(sT0)}, {s(sT0)}, {s(sM0)}")
        a(f"s_add_u32 {s(sT0)}, {s(sT0)}, {hx(H_OFF)}")
        a(f"v_lshl_add_u32 {v(vLin)}, {v(vL)}, 4, {s(sT0)}")
        a.label(ld)
        a(f"s_mov_b32 {s(sKd)}, {s(sKp)}")
        a(f"v_lshrrev_b32 {v(t[0])}, 3, {v(vL)}")
        a(f"s_lshl_b32 {s(sT0)}, {s(sLW)}, 4")
        a(f"v_add_u32 {v(t[0])}, {s(sT0)}, {v(t[0])}")
        a(f"v_and_b32 {v(t[1])}, 7, {v(vL)}")
        a(f"v_bfe_u32 {v(t[2])}, {v(vL)}, 4, 1")
        a(f"v_lshlrev_b32 {v(t[2])}, 2, {v(t[2])}")
        a(f"v_xor_b32 {v(t[1])}, {v(t[1])}, {v(t[2])}")
        a(f"s_lshl_b32 {s(sT0)}, {s(sDT)}, 7")
        a(f"v_lshl_add_u32 {v(vOg)}, {v(t[1])}, 4, {s(sT0)}")
        a(f"v_lshl_add_u32 {v(vOg)}, {v(t[0])}, 10, {v(vOg)}")
        a(f"v_add_u32 {v(vOg1)}, {8192-1024}, {v(vOg)}")

    def pf_setup():
        a(f"s_lshr_b32 {s(sT0)}, s2, 3")
        a(f"s_lshl2_add_u32 {s(sT0)}, {s(sT0)}, {s(sLW)}")
        a(f"s_mul_i32 {s(sT1)}, {s(sT0)}, {8*2752}")
        a(f"s_mul_i32 {s(sT2)}, {s(sHalf)}, 736")
        a(f"s_add_u32 {s(sT1)}, {s(sT1)}, {s(sT2)}")
        a(f"v_min_u32 {v(t[2])}, 47, {v(vL)}")
        a(f"v_lshl_add_u32 {v(t[2])}, {v(t[2])}, 4, {s(sT1)}")
        a(f"s_lshl_b32 {s(sT1)}, {s(sT0)}, 15")
        a(f"s_lshr_b32 {s(sT2)}, {s(sRB)}, 2")
        a(f"s_lshl_b32 {s(sT2)}, {s(sT2)}, 21")
        a(f"s_add_u32 {s(sT1)}, {s(sT1)}, {s(sT2)}")
        a(f"v_lshl_add_u32 {v(t[1])}, {v(vL)}, 4, {s(sT1)}")
        a(f"s_cmp_lt_u32 {s(sT0)}, 32")
        a(f"s_cselect_b32 s24, s{P_CRE}, s{P_CIM}")
        a(f"s_cselect_b32 s25, s{P_CRE+1}, s{P_CIM+1}")
        a(f"s_and_b32 {s(sT0)}, {s(sT0)}, 31")
        a(f"s_lshl_b32 {s(sT0)}, {s(sT0)}, 13")
        a(f"s_lshl_b32 {s(sT1)}, {s(sHalf)}, 18")
        a(f"s_add_u32 {s(sT0)}, {s(sT0)}, {s(sT1)}")
        a(f"v_lshl_add_u32 {v(t[0])}, {v(vL)}, 4, {s(sT0)}")

    def pf(q, kind, n):
        for e in range(n):
            d = 32 + 4 * (e % 8)
            if kind == '1':
                q.issue(f"global_load_dwordx4 {v(d,4)}, {v(t[2])}, {sp(P_WIN)}")
                a(f"v_add_u32 {v(t[2])}, 2752, {v(t[2])}")
            else:
                r, base, pol = (t[1], sp(P_WSP), OPT['ntt']) if kind == 'w' else (t[0], "s[24:25]", "")
                q.issue(f"global_load_dwordx4 {v(d,4)}, {v(r)}, {base} offset:{(e%4)*1024}{pol}")
                if e % 4 == 3:
                    a(f"v_add_u32 {v(r)}, 4096, {v(r)}")

    def gw_dma(q, k):
        a(f"s_add_u32 m0, {s(sM0)}, {(k % GW_R) * 16384}")
        a(f"s_and_b32 {s(sKp)}, {s(sKp)}, {s(sMask2)}")
        for e in range(4):
            q.issue(f"buffer_load_dwordx4 {v(vPg[e])}, {srd(SRD_PA)}, {s(sKp)} offen offset:{e*1024} lds")
        a(f"s_addk_i32 {s(sKp)}, 128")

    def p1_loader(kind):
        q = VmQ(a)
        z = kind == 'z'
        nst = 16 if z else 8
        stage = Z_STAGE if z else U_STAGE
        tok = {}
        a(f"s_and_b32 {s(sKx)}, {s(sK1)}, 7")
        if z:
            a(f"s_mul_i32 {s(sKw)}, {s(sKx)}, {64*2752}")
            a(f"s_mov_b32 s24, {64*2752}")
            a(f"s_mov_b32 s25, {8*64*2752}")
            a(f"s_mul_i32 {s(sM1)}, {s(sLW)}, 3072")
        a(f"s_lshl_b32 {s(sKx)}, {s(sKx)}, 7")

        def issue_x(k):
            slot = p1slot(z, k)
            a(f"s_add_u32 m0, {s(sM0)}, {slot}")
            a(f"s_and_b32 {s(sKx)}, {s(sKx)}, 0x380")
            for e in range(4):
                q.issue(f"buffer_load_dwordx4 {v(vX[e])}, {srd(SRD_X)}, {s(sKx)} offen offset:{e*1024} lds")
            return 4

        def issue_w(k):
            slot = p1slot(z, k)
            a(f"s_add_u32 m0, {s(sM1 if z else sM0)}, {slot+16384}")
            if z:
                if k == 8:
                    for p in range(3):
                        a(f"v_subrev_u32 {v(vB[p])}, 1376, {v(vB[p])}")
                a(f"s_addk_i32 {s(sKx)}, 128")
                for p in range(3):
                    tok[k] = q.issue(f"buffer_load_dwordx4 {v(vB[p])}, {srd(SRD_B)}, {s(sKw)} offen offset:{p*1024} lds")
                a(f"s_add_u32 {s(sKw)}, {s(sKw)}, s24")
                a(f"s_cmp_eq_u32 {s(sKw)}, s25")
                a(f"s_cselect_b32 {s(sKw)}, 0, {s(sKw)}")
                return 3
            a("s_nop 0")
            for e in range(4):
                tok[k] = q.issue(f"buffer_load_dwordx4 {v(vB[e])}, {srd(SRD_B)}, {s(sKx)} offen offset:{e*1024} lds")
            a(f"s_addk_i32 {s(sKx)}, 128")
            return 4

        items = [(k, f) for k in range(nst) for f in (issue_x, issue_w)]
        for k, f in items[:2 * P1_R]:
            f(k)
        items = items[2 * P1_R:]
        setup_rest()
        if not z:
            pf_setup()
        q.need(tok[0])
        a("s_barrier")
        stamp(a, 1)
        budget = 0.0
        for k in range(1, nst + 1):
            budget += (OPT["q9"] if (z and k == 9) else (OPT["qz"] if z else 8))
            while items and items[0][0] <= k - 2 + P1_R and (budget >= 3 or items[0][0] <= k + 1):
                kk, f = items.pop(0)
                budget -= f(kk)
            budget = min(budget, 3)
            if not z:
                if k == 1 and '1' in OPT["pf"]:
                    pf(q, '1', 8)
                if k in (3, 4) and 'c' in OPT["pf"]:
                    pf(q, 'c', 4)
                for kk in (2 * (k - 5), 2 * (k - 5) + 1):
                    if 0 <= kk < GW_R and OPT["uearly"]:
                        gw_dma(q, kk)
            if k < nst:
                q.need(tok[k])
            a("s_barrier")
            if k in ((9, 11, 13) if z else (4, 5, 6)):
                stamp(a, "abc"[((9, 11, 13) if z else (4, 5, 6)).index(k)])
        stamp(a, 2)
        if not z and not OPT["uearly"]:
            for kk in range(GW_R):
                gw_dma(q, kk)
        a("s_branch L_p2load")

    a(f"s_and_b32 {s(sT1)}, {s(sLW)}, 1")
    a(f"s_lshl_b32 {s(sT1)}, {s(sT1)}, 5")
    a(f"s_lshl_b32 {s(sT0)}, {s(sRB)}, 7")
    a(f"s_add_u32 {s(sT0)}, {s(sT0)}, {s(sT1)}")
    a(f"s_lshr_b32 {s(sT2)}, {s(sLW)}, 1")
    a(f"s_lshl3_add_u32 {s(sT0)}, {s(sT2)}, {s(sT0)}")
    a(f"v_lshrrev_b32 {v(t[0])}, 5, {v(vL)}")
    a(f"v_bfe_u32 {v(t[1])}, {v(vL)}, 3, 1")
    a(f"v_lshl_add_u32 {v(t[0])}, {v(t[0])}, 2, {v(t[1])}")
    a(f"v_bfe_u32 {v(t[1])}, {v(vL)}, 4, 1")
    a(f"v_lshl_add_u32 {v(t[0])}, {v(t[0])}, 4, {v(t[1])}")
    a(f"v_add_u32 {v(t[0])}, {s(sT0)}, {v(t[0])}")
    rows4(vX, t[0], 10, step=2)
    a(f"s_lshl_b32 {s(sT0)}, {s(sCol)}, 6")
    a(f"s_add_u32 {s(sT0)}, {s(sT0)}, {s(sT1)}")
    a(f"v_add_u32 {v(t[0])}, {s(sT0)}, {v(t[2])}")
    rows4(vB, t[0], 10)
    a("s_waitcnt lgkmcnt(0)")
    make_srd(a, SRD_X, P_X, 2048 * 1024)
    a(f"s_cmp_lt_u32 {s(sLW)}, 2")
    a(f"s_cselect_b32 s{SRD_B}, s{P_BRE}, s{P_BIM}")
    a(f"s_cselect_b32 s{SRD_B+1}, s{P_BRE+1}, s{P_BIM+1}")
    a(f"s_and_b32 s{SRD_B+1}, s{SRD_B+1}, 0xffff")
    a(f"s_mov_b32 s{SRD_B+2}, {hx(512*1024)}")
    a(f"s_mov_b32 s{SRD_B+3}, 0x20000")
    p1_loader('u')
    a.label("L_zload")
    a(f"s_lshl_b32 {s(sT0)}, {s(sRB)}, 7")
    a(f"s_lshl_b32 {s(sT1)}, {s(sLW)}, 5")
    a(f"s_add_u32 {s(sT0)}, {s(sT0)}, {s(sT1)}")
    a(f"v_add_u32 {v(t[0])}, {s(sT0)}, {v(t[2])}")
    rows4(vX, t[0], 10)
    s_unit0(a, sT0, sCol, sT1)
    a(f"s_lshl_b32 {s(sT0)}, {s(sT0)}, 5")
    a(f"s_add_u32 {s(sT0)}, {s(sT0)}, {2048 + 1376}")
    a(f"v_lshrrev_b32 {v(t[0])}, 2, {v(vL)}")
    a(f"s_lshl_b32 {s(sT1)}, {s(sLW)}, 4")
    a(f"v_add_u32 {v(t[0])}, {s(sT1)}, {v(t[0])}")
    a(f"v_and_b32 {v(t[1])}, 3, {v(vL)}")
    a(f"v_mul_u32_u24 {v(vB[0])}, 2752, {v(t[0])}")
    a(f"v_lshl_add_u32 {v(vB[0])}, {v(t[1])}, 4, {v(vB[0])}")
    a(f"v_add_u32 {v(vB[0])}, {s(sT0)}, {v(vB[0])}")
    a(f"v_subrev_u32 {v(vB[1])}, {1024-64}, {v(vB[0])}")
    a(f"v_subrev_u32 {v(vB[2])}, {2048-128}, {v(vB[0])}")
    a("s_waitcnt lgkmcnt(0)")
    make_srd(a, SRD_X, P_X, 2048 * 1024)
    a(f"s_sub_u32 s{SRD_B}, s{P_WIN}, 2048")
    a(f"s_subb_u32 s{SRD_B+1}, s{P_WIN+1}, 0")
    a(f"s_and_b32 s{SRD_B+1}, s{SRD_B+1}, 0xffff")
    a(f"s_mov_b32 s{SRD_B+2}, {hx(512*2752 + 2048)}")
    a(f"s_mov_b32 s{SRD_B+3}, 0x20000")
    p1_loader('z')

    a.label("L_p2load")
    a(f"s_lshr_b32 {s(sM1)}, {s(sM0)}, 1")
    a(f"s_cmp_eq_u32 {s(sRole)}, 15")
    a("s_cbranch_scc1 L_gateload")
    a(f"s_cmp_ge_u32 {s(sRole)}, 11")
    a("s_cbranch_scc1 L_yload")

    def p2_loader(kind):
        G = kind == 'g'
        n = 32 if G else 17
        if not G:
            a(f"v_lshrrev_b32 {v(t[0])}, 3, {v(vL)}")
            a(f"s_lshl2_add_u32 {s(sT0)}, {s(sRB)}, {s(sLW)}")
            a(f"s_lshl_b32 {s(sT0)}, {s(sT0)}, 5")
            a(f"v_add_u32 {v(t[0])}, {s(sT0)}, {v(t[0])}")
            rows4(vX, t[0], 10)
            a(f"s_sub_u32 s24, {s(sRole)}, 11")
            a(f"s_lshl_b32 s24, s24, 8")
            a(f"s_add_u32 s25, s24, 128")
        wr, dr = (GW_R, GZ_R) if G else (YC_R, YH_R)
        dsz = 8192 if G else 16384
        dper = 2 if G else 4
        q = VmQ(a)
        tokw, tokd = {}, {}

        def x_dma(k, slot, so, tk):
            a(f"s_add_u32 m0, {s(sM0)}, {slot}")
            a("s_nop 0")
            for e in range(4):
                tk[k] = q.issue(f"buffer_load_dwordx4 {v(vX[e])}, {srd(SRD_X)}, {so} offen offset:{e*1024} lds")

        def w_dma(k):
            if k == 16 and not G:
                return x_dma(k, (k % wr) * 16384, "s24", tokw)
            sr = SRD_PA if (G or k < 8) else SRD_PB
            a(f"s_add_u32 m0, {s(sM0)}, {(k % wr) * 16384}")
            a(f"s_and_b32 {s(sKp)}, {s(sKp)}, {s(sMask2)}")
            for e in range(4):
                tokw[k] = q.issue(f"buffer_load_dwordx4 {v(vPg[e])}, {srd(sr)}, {s(sKp)} offen offset:{e*1024} lds")
            a(f"s_addk_i32 {s(sKp)}, 128")

        def d_dma(k):
            slot = wr * 16384 + (k % dr) * dsz
            if k == 16 and not G:
                return x_dma(k, slot, "s25", tokd)
            a(f"s_and_b32 {s(sKd)}, {s(sKd)}, {s(sMask2)}")
            a(f"s_add_u32 m0, {s(sM1 if G else sM0)}, {slot}")
            a(f"s_lshl_b32 {s(sKa)}, {s(sKd)}, {6 if G else 7}")
            if not G and k >= 8:
                a(f"s_add_u32 {s(sKa)}, {s(sKa)}, {8*16384}")
            for e in range(dper):
                tokd[k] = q.issue(f"buffer_load_dwordx4 {v(vLin)}, {srd(SRD_WS)}, {s(sKa)} offen offset:{e*1024}{OPT['dsc']} lds")
            a(f"s_addk_i32 {s(sKd)}, 128")

        l1, l2 = a.newlabel("xa"), a.newlabel("xb")
        if G:
            a(f"s_cmp_eq_u32 {s(sIsZ)}, 0")
            a(f"s_cbranch_scc1 {l1}")
        for k in range(wr):
            if k == OPT["pre1"]:
                a("s_barrier")
            w_dma(k)
        if G:
            a(f"s_branch {l2}")
            a.label(l1)
            if 'w' in OPT["pf"]:
                a(f"s_lshl2_add_u32 {s(sT0)}, {s(sSlot)}, {s(sLW)}")
                a(f"s_lshl4_add_u32 {s(sT0)}, {s(sRB)}, {s(sT0)}")
                a(f"s_lshl_b32 {s(sT0)}, {s(sT0)}, 15")
                a(f"s_add_u32 {s(sT0)}, {s(sT0)}, {22*128}")
                a(f"v_lshlrev_b32 {v(t[0])}, 4, {v(vL)}")
                if OPT["wlate"]:
                    a("s_barrier")
                for e in range(8):
                    a(f"buffer_load_dwordx4 {v(32+4*e,4)}, {v(t[0])}, {srd(SRD_PA)}, {s(sT0)} offen")
                    a(f"buffer_load_dword {v(31)}, {v(t[0])}, {srd(SRD_PA)}, {s(sT0)} offen offset:256")
                    a(f"s_addk_i32 {s(sT0)}, 0x1000")
            if not ('w' in OPT["pf"] and OPT["wlate"]):
                a("s_barrier")
            a.label(l2)
        a("s_barrier")
        stamp(a, 3)
        for k in range(dr):
            d_dma(k)
        q.need(tokd[0])
        a("s_barrier")
        stamp(a, 4)
        for k in range(n):
            if k >= 1:
                if k - 1 + dr < n:
                    d_dma(k - 1 + dr)
                if k - 1 + wr < n:
                    w_dma(k - 1 + wr)
            if not G and k == 14:
                a(f"s_and_b32 {s(sT0)}, {s(sRB)}, 3")
                a(f"s_lshl2_add_u32 {s(sT0)}, {s(sTH3)}, {s(sT0)}")
                a(f"s_lshl2_add_u32 {s(sT0)}, {s(sT0)}, {s(sLW)}")
                a(f"s_mul_i32 {s(sT0)}, {s(sT0)}, {22*1024}")
                a(f"s_lshl_b32 {s(sT1)}, {s(sHalf)}, 9")
                a(f"s_add_u32 {s(sT0)}, {s(sT0)}, {s(sT1)}")
                a(f"v_lshrrev_b32 {v(t[0])}, 5, {v(vL)}")
                a(f"v_and_b32 {v(t[1])}, 31, {v(vL)}")
                a(f"v_lshlrev_b32 {v(t[1])}, 4, {v(t[1])}")
                a(f"v_lshl_add_u32 {v(t[0])}, {v(t[0])}, 10, {v(t[1])}")
            if not G and k >= 14:
                for e in range(4 if k < 16 else 3):
                    q.issue(f"buffer_load_dwordx4 {v(32+4*e,4)}, {v(t[0])}, {srd(SRD_O)}, {s(sT0)} offen")
                    a(f"s_addk_i32 {s(sT0)}, 0x800")
            if k + 1 < n:
                q.need(max(tokd[k + 1], tokw[k + 1]))
            a("s_barrier")
        stamp(a, 5)
        a("s_branch L_p3load")

    p2_loader('g')
    a.label("L_yload")
    p2_loader('y')
    a.label("L_gateload")
    a("s_barrier")
    a("s_barrier")
    a.label("L_p3load")
    q = VmQ(a)
    tokw, tok = {}, {}

    def wo_dma(j):
        a(f"s_add_u32 m0, {s(sM1)}, {90112 + (j % 9) * 8192}")
        a(f"s_mov_b32 {s(sKa)}, {j*65536}")
        q.issue(f"buffer_load_dwordx4 {v(vOg)}, {srd(SRD_O)}, {s(sKa)} offen lds")
        tokw[j] = q.issue(f"buffer_load_dwordx4 {v(vOg1)}, {srd(SRD_O)}, {s(sKa)} offen offset:1024 lds")
    a(f"s_lshl1_add_u32 {s(sT0)}, {s(sRB)}, {s(sTH3)}")
    a(f"s_lshr_b32 {s(sT1)}, {s(sLW)}, 1")
    a(f"s_lshl1_add_u32 {s(sT0)}, {s(sT0)}, {s(sT1)}")
    a(f"s_mul_i32 {s(sT0)}, {s(sT0)}, {44*1024}")
    a(f"s_and_b32 {s(sT1)}, {s(sLW)}, 1")
    a(f"s_lshl_b32 {s(sT1)}, {s(sT1)}, 11")
    a(f"s_add_u32 {s(sT0)}, {s(sT0)}, {s(sT1)}")
    a(f"v_lshl_add_u32 {v(vLin)}, {v(vL)}, 4, {s(sT0)}")
    for j in range(9):
        if j == OPT["pre2"]:
            a("s_barrier")
        wo_dma(j)
    a(f"s_mov_b32 m0, {s(sM1)}")
    a(f"s_mov_b32 {s(sKa)}, 0")
    stamp(a, "e")
    a("s_barrier")
    stamp(a, "h")
    for k in range(11):
        for e in range(2):
            tok[k] = q.issue(f"buffer_load_dwordx4 {v(vLin)}, {srd(SRD_WS)}, {s(sKa)} offen offset:{e*1024}{OPT['dsc']} lds")
        if k < 10:
            a(f"s_addk_i32 m0, 0x2000")
            a(f"s_addk_i32 {s(sKa)}, 0x1000")
    for k in range(11):
        q.need(max(tok[k], tokw[k]))
        a("s_barrier")
        if k == 0:
            stamp(a, 6)
        if k in (1, 2):
            wo_dma(8 + k)
    endpgm(a)


def gen_consumer(a, vL):
    GW_R, GZ_R = OPT["gw"], OPT["gz"]
    MF = "v_mfma_f32_32x32x16_bf16"
    va = Alloc(2, 240, 'v')
    t = [va() for _ in range(8)]
    vN2 = va(2)
    vn5, vh, vP, vO = va(), va(), va(), va()
    sLo, sHi = 34, 35
    a(f"v_and_b32 {v(vn5)}, 31, {v(vL)}")
    a(f"v_lshrrev_b32 {v(vh)}, 5, {v(vL)}")
    a(f"v_bfe_u32 {v(t[0])}, {v(vL)}, 1, 3")
    a(f"v_xor_b32 {v(t[0])}, {v(t[0])}, {v(vh)}")
    a(f"v_lshlrev_b32 {v(t[0])}, 4, {v(t[0])}")
    a(f"v_lshl_add_u32 {v(vP)}, {v(vn5)}, 7, {v(t[0])}")
    if OPT["cpf"]:
        a("s_getpc_b64 s[12:13]")
        a.label("L_pc")
        a(f"s_lshr_b32 {s(sT0)}, s2, 3")
        a(f"s_lshl2_add_u32 {s(sT0)}, {s(sT0)}, {s(sW)}")
        a(f"s_lshl_b32 {s(sT0)}, {s(sT0)}, 9")
        a(f"s_sub_u32 s12, s12, L_pc-{KNAME}")
        a(f"s_subb_u32 s13, s13, 0")
        a(f"v_lshl_add_u32 {v(t[6])}, {v(vL)}, 3, {s(sT0)}")
        a(f"v_min_u32 {v(t[6])}, L_end-{KNAME}-8, {v(t[6])}")
        a(f"global_load_dwordx2 v[254:255], {v(t[6])}, s[12:13]")
    a(f"v_mov_b32 {v(t[7])}, 0")
    a(f"v_mov_b32 v240, 0")
    a("s_waitcnt lgkmcnt(0)")
    a(f"s_and_b32 {s(sLo)}, {s(sW)}, 1")
    a(f"s_lshr_b32 {s(sHi)}, {s(sW)}, 1")
    sk = a.newlabel("nopub")
    a(f"s_or_b32 {s(sT0)}, s2, {s(sW)}")
    a(f"s_cmp_lg_u32 {s(sT0)}, 0")
    a(f"s_cbranch_scc1 {sk}")
    a(f"s_or_b32 {s(sN+1)}, {s(sN+1)}, 0x80000000")
    a(f"v_mov_b32 {v(vN2)}, {s(sN)}")
    a(f"v_mov_b32 {v(vN2+1)}, {s(sN+1)}")
    a(f"global_store_dwordx2 {v(t[7])}, {v(vN2,2)}, {sp(P_DBG)} sc1")
    a.label(sk)
    make_srd(a, SRD_WS, P_WS, WS_SIZE)
    make_srd(a, SRD_X, P_X, 2048 * 1024)
    make_srd(a, SRD_O, P_OUT, 2048 * 2048)
    a(f"s_lshl1_add_u32 {s(sT0)}, {s(sRB)}, {s(sTH3)}")
    a(f"s_lshl1_add_u32 {s(sT0)}, {s(sT0)}, {s(sHi)}")
    a(f"s_lshl_b32 {s(sT0)}, {s(sT0)}, 16")
    a(f"s_lshl1_add_u32 {s(sT1)}, {s(sDT)}, {s(sLo)}")
    a(f"s_lshl_b32 {s(sT1)}, {s(sT1)}, 7")
    a(f"s_mov_b64 s[82:83], {sp(P_WOUT)}")
    a(f"s_add_u32 s43, {s(sT0)}, {s(sT1)}")
    a(f"v_lshl_add_u32 {v(vO)}, {v(vh)}, 4, s43")
    a(f"v_lshl_add_u32 {v(vO)}, {v(vn5)}, 11, {v(vO)}")
    mark0 = va.mark()

    def nonce_issue():
        a(f"v_mov_b32 {v(t[7])}, 0")
        a(f"global_load_dwordx2 {v(vN2,2)}, {v(t[7])}, {sp(P_DBG)} sc1")

    def nonce_finish():
        L, D = a.newlabel("nonce"), a.newlabel("nonce_ok")
        a(f"s_mov_b32 {s(sCnt)}, {hx(OPT['spin'])}")
        a.label(L)
        a("s_waitcnt vmcnt(0)")
        a(f"v_readfirstlane_b32 {s(sN)}, {v(vN2)}")
        a(f"v_readfirstlane_b32 {s(sN+1)}, {v(vN2+1)}")
        a(f"s_cmp_lg_u32 {s(sN+1)}, 0")
        a(f"s_cbranch_scc1 {D}")
        a(f"s_sub_u32 {s(sCnt)}, {s(sCnt)}, 1")
        a(f"s_cbranch_scc1 {D}")
        a("s_sleep 1")
        nonce_issue()
        a(f"s_branch {L}")
        a.label(D)

    def pat4(base_s, maxc, minc=0):
        out = []
        for ss in range(4):
            x = va()
            a(f"v_xor_b32 {v(t[0])}, {32*ss}, {v(vP)}")
            a(f"v_add_u32 {v(x)}, {base_s}, {v(t[0])}")
            out.append(LdsAddr(a, va, x, maxc, minc))
        return out

    a(f"s_cmp_eq_u32 {s(sIsZ)}, 1")
    a("s_cbranch_scc1 L_zcons")
    vCh, vq = va(), va()
    a(f"v_and_b32 {v(t[1])}, 15, {v(vL)}")
    a(f"v_lshrrev_b32 {v(vq)}, 4, {v(vL)}")
    a(f"s_lshl_b32 {s(sT1)}, {s(sW)}, 4")
    a(f"v_add_u32 {v(vCh)}, {s(sT1)}, {v(t[1])}")
    a(f"s_lshl_b32 {s(sT0)}, {s(sCol)}, 6")
    a(f"v_add_lshl_u32 {v(t[0])}, {v(vCh)}, {s(sT0)}, 1")
    vLre, vLim, vLdt = va(), va(), va()
    a(f"global_load_ushort {v(vLre)}, {v(t[0])}, {sp(P_LRE)}")
    a(f"global_load_ushort {v(vLim)}, {v(t[0])}, {sp(P_LIM)}")
    a(f"global_load_ushort {v(vLdt)}, {v(t[0])}, {sp(P_LDT)}")
    a(f"s_mov_b64 s[36:37], {sp(P_CRE)}")
    a(f"s_mov_b64 s[30:31], {sp(P_CIM)}")
    RA = pat4("0", 163839)
    a(f"v_bfe_u32 {v(t[1])}, {v(vL)}, 4, 1")
    a(f"v_mul_u32_u24 {v(t[1])}, {48*128}, {v(t[1])}")
    a(f"s_lshl_b32 {s(sT0)}, {s(sW)}, 11")
    a(f"v_add_u32 {v(t[1])}, {s(sT0)}, {v(t[1])}")
    RB = []
    for ss in range(4):
        x = va()
        a(f"v_add_u32 {v(x)}, {v(RA[ss].regs[0])}, {v(t[1])}")
        RB.append(LdsAddr(a, va, x, 163839))
    vla, vlb = va(), va()
    Lm, Cf, M16, M32, MS = [va(2) for _ in range(5)]
    W = [va(2) for _ in range(4)]
    a("s_waitcnt vmcnt(0)")
    a(f"v_lshlrev_b32 {v(vLre)}, 16, {v(vLre)}")
    a(f"v_lshlrev_b32 {v(vLim)}, 16, {v(vLim)}")
    a(f"v_lshlrev_b32 {v(vLdt)}, 16, {v(vLdt)}")
    a(f"v_mul_f32 {v(t[0])}, {hx(f2u(LOG2E))}, {v(vLdt)}")
    a(f"v_exp_f32 {v(t[0])}, {v(t[0])}")
    a("s_nop 0")
    a(f"v_cvt_pk_bf16_f32 {v(t[0])}, {v(t[0])}, {v(t[0])}")
    a(f"v_lshlrev_b32 {v(t[0])}, 16, {v(t[0])}")
    a(f"v_mul_f32 {v(vla)}, {v(t[0])}, {v(vLre)}")
    a(f"v_mul_f32 {v(vlb)}, {v(t[0])}, {v(vLim)}")
    a(f"v_mul_f32 {v(vla)}, {hx(f2u(LOG2E))}, {v(vla)}")
    a(f"v_mul_f32 {v(vlb)}, {hx(f2u(1.0/(2*math.pi)))}, {v(vlb)}")
    a(f"v_mov_b32 {v(t[1])}, 1.0")
    cpow(a, Lm, t[1], vla, vlb, t[2])
    a(f"v_mul_f32 {v(t[2])}, {v(vLre)}, {v(vLre)}")
    a(f"v_fma_f32 {v(t[2])}, {v(vLim)}, {v(vLim)}, {v(t[2])}")
    a(f"v_rcp_f32 {v(t[2])}, {v(t[2])}")
    a(f"v_add_f32 {v(t[3])}, -1.0, {v(Lm)}")
    a(f"v_add_f32 {v(t[2])}, {v(t[2])}, {v(t[2])}")
    a(f"v_mul_f32 {v(Cf)}, {v(t[3])}, {v(vLre)}")
    a(f"v_fma_f32 {v(Cf)}, {v(Lm+1)}, {v(vLim)}, {v(Cf)}")
    a(f"v_mul_f32 {v(Cf+1)}, {v(Lm+1)}, {v(vLre)}")
    a(f"v_fma_f32 {v(Cf+1)}, -{v(t[3])}, {v(vLim)}, {v(Cf+1)}")
    a(f"v_mul_f32 {v(Cf)}, {v(Cf)}, {v(t[2])}")
    a(f"v_mul_f32 {v(Cf+1)}, {v(Cf+1)}, {v(t[2])}")
    a(f"v_mov_b32 {v(t[1])}, {hx(f2u(16.0))}")
    cpow(a, M16, t[1], vla, vlb, t[2])
    a(f"v_mov_b32 {v(t[1])}, {hx(f2u(32.0))}")
    cpow(a, M32, t[1], vla, vlb, t[2])
    a(f"v_lshlrev_b32 {v(t[1])}, 5, {v(vq)}")
    a(f"v_cvt_f32_u32 {v(t[1])}, {v(t[1])}")
    cpow(a, MS, t[1], vla, vlb, t[2])
    NM = [16, 18, 20, 22]
    for i in range(4):
        a(f"s_sub_i32 {s(sT0)}, {s(sRB)}, {1+4*i}")
        a(f"v_sub_u32 {v(t[3])}, {s(sT0)}, {v(vq)}")
        a(f"v_cmp_gt_i32 {sp(NM[i])}, 0, {v(t[3])}")
        a(f"v_max_i32 {v(t[1])}, 0, {v(t[3])}")
        a(f"v_lshlrev_b32 {v(t[1])}, 7, {v(t[1])}")
        a(f"v_cvt_f32_u32 {v(t[1])}, {v(t[1])}")
        cpow(a, W[i], t[1], vla, vlb, t[2])
    QM = [None, 24, 26, 28]
    for i in range(1, 4):
        a(f"v_cmp_eq_u32 {sp(QM[i])}, {i}, {v(vq)}")
    fx = [[[va(4, 4) for tt in range(4)] for s2 in range(2)] for b in range(2)]
    fb = [[va(4, 4) for s2 in range(2)] for b in range(2)]
    acc = [va(16, 4) for tt in range(4)]
    if OPT["l3"]:
        assert va.next <= 224
        a(f"s_lshl2_add_u32 {s(sT0)}, s2, {s(sW)}")
        a(f"v_lshlrev_b32 {v(t[0])}, 4, {v(vL)}")
        if 'c' in OPT["l3"]:
            a(f"s_lshl_b32 {s(sT1)}, {s(sT0)}, 10")
            a(f"v_add_u32 {v(t[1])}, {s(sT1)}, {v(t[0])}")
            a(f"global_load_dwordx4 v[224:227], {v(t[1])}, s[36:37]")
            a(f"global_load_dwordx4 v[228:231], {v(t[1])}, s[30:31]")
        if 'w' in OPT["l3"]:
            a(f"s_lshl_b32 {s(sT1)}, {s(sT0)}, 14")
            a(f"v_add_u32 {v(t[1])}, {s(sT1)}, {v(t[0])}")
            for e in range(16):
                a(f"global_load_dwordx4 {v(224+4*(e%8),4)}, {v(t[1])}, {sp(P_WSP)} offset:{(e%4)*1024}{OPT['ntt']}")
                if e % 4 == 3:
                    a(f"v_add_u32 {v(t[1])}, 4096, {v(t[1])}")
        if 'o' in OPT["l3"]:
            a(f"s_mul_i32 {s(sT1)}, {s(sT0)}, 1376")
            a(f"v_add_u32 {v(t[1])}, {s(sT1)}, {v(t[0])}")
            a(f"global_load_dwordx4 v[224:227], {v(t[1])}, s[82:83]")
            a(f"global_load_dwordx4 v[228:231], {v(t[1])}, s[82:83] offset:352")

    def u_reads(k, h):
        sl = p1slot(False, k)
        out = []
        for s2 in range(2):
            ss = 2 * h + s2
            out.append(f"ds_read_b128 {v(fb[h][s2],4)}, {RB[ss].at(sl+16384)}")
            for tt in range(4):
                out.append(f"ds_read_b128 {v(fx[h][s2][tt],4)}, {RA[ss].at(sl+tt*4096)}")
        return out

    def u_mfmas(k, h):
        return [f"{MF} {v(acc[tt],16)}, {v(fx[h][s2][tt],4)}, {v(fb[h][s2],4)}, {'0' if (k,h,s2)==(0,0,0) else v(acc[tt],16)}"
                for s2 in range(2) for tt in range(4)]
    uloop(a, 8, 2, u_reads, u_mfmas, 2,
          hooks={'start': lambda: stamp(a, 1), (4, 1): nonce_issue})
    stamp(a, 2)
    zero_ctr(a, t[0], t[1], U_CTR)
    fr = fx[0][0][0]
    nonce_finish()
    a("s_nop 3")
    for m in range(2):
        for i in range(16):
            a(f"v_permlane16_swap_b32 {v(acc[2*m]+i)}, {v(acc[2*m+1]+i)}")
    Pre = [acc[2 * (i >> 3)] + 2 * (i & 7) for i in range(16)]
    Pim = [acc[2 * (i >> 3) + 1] + 2 * (i & 7) for i in range(16)]
    cur = (Pre[0], Pim[0])
    for i in range(1, 16):
        nx = (fr + 4 * (i & 1), fr + 4 * (i & 1) + 2)
        pk_cfma(a, nx[0], nx[1], Lm, cur[0], cur[1], Pre[i], Pim[i])
        cur = nx
    E0, E1 = fr + 8, fr + 10
    a(f"v_mov_b32 {v(E0)}, {v(cur[0])}")
    a(f"v_mov_b32 {v(E0+1)}, {v(cur[1])}")
    a(f"v_mov_b32 {v(E1)}, {v(cur[0]+1)}")
    a(f"v_mov_b32 {v(E1+1)}, {v(cur[1]+1)}")
    cfma(a, E1, M16, E0, E1)
    X = [fr + 16, fr + 18, fr + 20, fr + 22]
    for c in range(2):
        a(f"v_mov_b32 {v(X[0]+c)}, {v(E1+c)}")
        a(f"v_mov_b32 {v(X[2]+c)}, {v(E1+c)}")
    a("s_nop 0")
    for c in range(2):
        a(f"v_permlane32_swap_b32 {v(X[0]+c)}, {v(X[2]+c)}")
    for c in range(2):
        a(f"v_mov_b32 {v(X[1]+c)}, {v(X[0]+c)}")
        a(f"v_mov_b32 {v(X[3]+c)}, {v(X[2]+c)}")
    a("s_nop 0")
    for c in range(2):
        a(f"v_permlane16_swap_b32 {v(X[0]+c)}, {v(X[1]+c)}")
        a(f"v_permlane16_swap_b32 {v(X[2]+c)}, {v(X[3]+c)}")
    cfma(a, X[1], M32, X[0], X[1])
    cfma(a, X[2], M32, X[1], X[2])
    G4 = fr + 24
    cfma(a, G4, M32, X[2], X[3])
    a(f"v_mov_b32 {v(G4+2)}, {s(sN)}")
    a(f"v_mov_b32 {v(G4+3)}, {s(sN+1)}")
    vSc = t[4]
    a(f"s_lshl_b32 {s(sT0)}, {s(sCol)}, 14")
    a(f"s_add_u32 {s(sT0)}, {s(sT0)}, {hx(SC_OFF)}")
    a(f"v_lshl_add_u32 {v(vSc)}, {v(vCh)}, 4, {s(sT0)}")
    a(f"s_lshl_b32 {s(sT0)}, {s(sRB)}, 10")
    a("s_mov_b64 exec, 0xffff")
    a(f"buffer_store_dwordx4 {v(G4,4)}, {v(vSc)}, {srd(SRD_WS)}, {s(sT0)} offen sc1")
    a("s_mov_b64 exec, -1")
    stamp(a, "a")
    vPo = t[5]
    a(f"v_lshl_add_u32 {v(vPo)}, {v(vq)}, 10, {v(vSc)}")
    GP = [fb[0][0], fb[0][1], fb[1][0], fb[1][1]]
    a(f"s_mov_b32 s30, 4096")
    a(f"s_mov_b32 s31, 8192")
    a(f"s_mov_b32 {s(sT0)}, 12288")
    loads = [f"buffer_load_dwordx4 {v(GP[i],4)}, {v(vPo)}, {srd(SRD_WS)}, {so} offen sc1" for i, so in enumerate(("0", "s30", "s31", s(sT0)))]
    PRE = fr + 14
    a(f"v_cndmask_b32 {v(PRE)}, 0, {v(X[0])}, {sp(QM[1])}")
    a(f"v_cndmask_b32 {v(PRE+1)}, 0, {v(X[0]+1)}, {sp(QM[1])}")
    for i in (2, 3):
        a(f"v_cndmask_b32 {v(PRE)}, {v(PRE)}, {v(X[i-1])}, {sp(QM[i])}")
        a(f"v_cndmask_b32 {v(PRE+1)}, {v(PRE+1)}, {v(X[i-1]+1)}, {sp(QM[i])}")
    UR = [fr + 32 + 2 * i for i in range(16)]
    for i in range(16):
        tm = t[2 * (i & 1)]
        a(f"v_pk_mul_f32 {v(UR[i],2)}, {v(Cf,2)}, {v(Pre[i],2)} op_sel:[0,0] op_sel_hi:[0,1]")
        a(f"v_pk_mul_f32 {v(tm,2)}, {v(Cf,2)}, {v(Pim[i],2)} op_sel:[0,0] op_sel_hi:[0,1]")
        a(f"v_pk_fma_f32 {v(UR[i],2)}, {v(Cf,2)}, {v(Pim[i],2)}, {v(UR[i],2)} op_sel:[1,0,0] op_sel_hi:[1,1,1] neg_lo:[1,0,0] neg_hi:[1,0,0]")
        a(f"v_pk_fma_f32 {v(Pim[i],2)}, {v(Cf,2)}, {v(Pre[i],2)}, {v(tm,2)} op_sel:[1,0,0] op_sel_hi:[1,1,1]")
    stamp(a, "b")
    poll(a, loads, [(GP[i] + 2, GP[i] + 3, i) for i in range(4)], NM, sleep=2)
    stamp(a, "c")
    for i in range(4):
        a(f"v_cndmask_b32 {v(GP[i])}, {v(GP[i])}, 0, {sp(NM[i])}")
        a(f"v_cndmask_b32 {v(GP[i]+1)}, {v(GP[i]+1)}, 0, {sp(NM[i])}")
    cmul(a, t[0], W[0], GP[0])
    for i in range(1, 4):
        cfma(a, t[0], W[i], GP[i], t[0])
    for sw in ("v_permlane16_swap_b32", "v_permlane32_swap_b32"):
        a(f"v_mov_b32 {v(t[2])}, {v(t[0])}")
        a(f"v_mov_b32 {v(t[3])}, {v(t[1])}")
        a("s_nop 1")
        a(f"{sw} {v(t[0])}, {v(t[2])}")
        a(f"{sw} {v(t[1])}, {v(t[3])}")
        a(f"v_add_f32 {v(t[0])}, {v(t[0])}, {v(t[2])}")
        a(f"v_add_f32 {v(t[1])}, {v(t[1])}, {v(t[3])}")
    cfma(a, PRE, MS, t[0], PRE)
    cfma(a, E0, M16, PRE, E0)
    cmul(a, t[0], Cf, PRE)
    cmul(a, t[2], Cf, E0)
    IR, II = X[0], X[1]
    a(f"v_mov_b32 {v(IR)}, {v(t[0])}")
    a(f"v_mov_b32 {v(IR+1)}, {v(t[2])}")
    a(f"v_mov_b32 {v(II)}, {v(t[1])}")
    a(f"v_mov_b32 {v(II+1)}, {v(t[3])}")
    cur = (IR, II)
    for i in range(16):
        pk_cfma(a, UR[i], Pim[i], Lm, cur[0], cur[1], UR[i], Pim[i])
        cur = (UR[i], Pim[i])
    a(f"v_lshlrev_b32 {v(t[0])}, 4, {v(vL)}")
    for m in range(1, 4):
        a(f"v_xor_b32 {v(t[m])}, {64*m}, {v(t[0])}")
    a(f"s_lshl_b32 {s(sT0)}, {s(sRB)}, 18")
    a(f"s_lshl_b32 {s(sT1)}, {s(sCol)}, 14")
    a(f"s_add_u32 {s(sT0)}, {s(sT0)}, {s(sT1)}")
    a(f"s_lshl_b32 {s(sT1)}, {s(sW)}, 12")
    a(f"s_add_u32 {s(sT0)}, {s(sT0)}, {s(sT1)}")
    a(f"s_add_u32 {s(sT0)}, {s(sT0)}, {hx(H_OFF)}")
    a(f"s_add_u32 {s(sT1)}, {s(sT0)}, {8*16384}")
    for part, src, neg in ((0, UR, ""), (1, Pim, "-")):
        for sub in range(2):
            for hf in range(2):
                o = acc[2 * part] + 8 * sub + 4 * hf
                for m in range(4):
                    i = 8 * hf + 2 * m
                    a(f"v_cvt_pk_bf16_f32 {v(o+m)}, {neg}{v(src[i]+sub)}, {neg}{v(src[i+1]+sub)}")
                m = 2 * sub + hf
                a(f"buffer_store_dwordx4 {v(o,4)}, {v(t[m])}, {srd(SRD_WS)}, {s(sT1 if part else sT0)} offen offset:{m*1024} sc1")
    a(f"s_lshl3_add_u32 {s(sT0)}, {s(sRB)}, {s(sCol)}")
    a(f"s_lshl_b32 {s(sT0)}, {s(sT0)}, 7")
    a(f"s_add_u32 {s(sT0)}, {s(sT0)}, {hx(FH_OFF)}")
    stamp(a, "i")
    a("s_waitcnt lgkmcnt(0)")
    a("s_barrier")
    store_flag(a, t[4], sT0, U_CTR)
    stamp(a, "d")
    a("s_branch L_p2cons")

    va.release(mark0)
    a.label("L_zcons")
    a(f"s_lshl_b32 {s(sT0)}, {s(sW)}, 12")
    RX = pat4(s(sT0), P1_R * Z_STAGE - 1)
    x = va()
    a(f"v_bfe_u32 {v(t[0])}, {v(vL)}, 2, 2")
    a(f"v_lshl_add_u32 {v(t[0])}, {v(vh)}, 3, {v(t[0])}")
    a(f"v_lshlrev_b32 {v(t[0])}, 6, {v(t[0])}")
    a(f"v_bfe_u32 {v(t[1])}, {v(vL)}, 4, 1")
    a(f"v_lshl_add_u32 {v(t[0])}, {v(t[1])}, 5, {v(t[0])}")
    a(f"v_and_b32 {v(t[1])}, 1, {v(vL)}")
    a(f"v_lshl_add_u32 {v(t[0])}, {v(t[1])}, 4, {v(t[0])}")
    a(f"v_bfe_u32 {v(t[1])}, {v(vL)}, 1, 1")
    a(f"v_lshl_add_u32 {v(x)}, {v(t[1])}, 3, {v(t[0])}")
    RW = LdsAddr(a, va, x, P1_R * Z_STAGE - 1)
    K, ONE = va(2), va(2)
    gelu_consts(a, K, ONE)
    a(f"s_cmp_lt_u32 {s(sCol)}, 3")
    a(f"s_cselect_b32 s16, 1.0, 0")
    a(f"s_cselect_b32 s17, 1.0, 0")
    a(f"s_cselect_b32 s18, 1, 0")
    a(f"s_cmp_eq_u32 {s(sCol)}, 7")
    a(f"s_cselect_b32 s18, 1, s18")
    fx = [[va(4, 4) for s2 in range(2)] for b in range(2)]
    fw = [[[va(4, 4) for p in range(3)] for s2 in range(2)] for b in range(2)]
    acc2 = [va(16, 4) for p in range(3)]
    acc1 = [192 + 16 * p for p in range(3)]
    GP = [va(4, 4) for _ in range(4)]
    ST = va(4, 4)
    vLn, vZ, vZx = va(), va(), va()
    a(f"v_lshl_add_u32 {v(t[0])}, {v(vn5)}, 1, {v(vh)}")
    a(f"v_lshlrev_b32 {v(vZ)}, 4, {v(t[0])}")
    sU = 19
    s_unit0(a, sU, sCol, sT0)
    a(f"s_lshl2_add_u32 {s(sT0)}, {s(sRB)}, {s(sW)}")
    a(f"s_mul_i32 {s(sT0)}, {s(sT0)}, 44")
    a(f"s_add_u32 {s(sT0)}, {s(sT0)}, {s(sU)}")
    a(f"s_lshl_b32 s22, {s(sT0)}, 10")
    a(f"s_add_u32 s23, s22, 4096")
    a(f"s_lshl1_add_u32 {s(sT0)}, {s(sRB)}, {s(sHi)}")
    a(f"s_lshl3_add_u32 {s(sT0)}, {s(sT0)}, {s(sLo)}")
    a(f"s_lshl_b32 {s(sT0)}, {s(sT0)}, 10")
    a(f"s_add_u32 {s(sT1)}, {s(sT0)}, {hx(Z2N_OFF)}")
    for e in range(6):
        a(f"s_add_u32 {s(sT0)}, {s(sU)}, {e}")
        a(f"s_lshr_b32 s{24+e}, {s(sT0)}, 2")
        a(f"s_lshl_b32 s{24+e}, s{24+e}, 18")
        a(f"s_add_u32 s{24+e}, s{24+e}, {s(sT1)}")
        a(f"s_and_b32 {s(sT0)}, {s(sT0)}, 3")
        a(f"s_lshl_b32 {s(sT0)}, {s(sT0)}, 11")
        a(f"s_add_u32 s{24+e}, s{24+e}, {s(sT0)}")
    vZe = va()
    a(f"s_and_b32 {s(sT0)}, {s(sU)}, 1")
    a(f"s_lshl_b32 {s(sT0)}, {s(sT0)}, 7")
    a(f"v_xor_b32 {v(vZe)}, {s(sT0)}, {v(vZ)}")
    a(f"v_xor_b32 {v(vZx)}, 128, {v(vZe)}")
    a(f"s_lshl_b32 {s(sT0)}, {s(sRB)}, 14")
    a(f"s_lshl_b32 {s(sT1)}, {s(sW)}, 9")
    a(f"s_add_u32 {s(sT0)}, {s(sT0)}, {s(sT1)}")
    a(f"s_add_u32 {s(sT0)}, {s(sT0)}, {hx(LN_OFF)}")
    a(f"v_lshl_add_u32 {v(vLn)}, {v(vn5)}, 4, {s(sT0)}")
    vLp = va()
    a(f"v_lshl_add_u32 {v(vLp)}, {v(vh)}, 13, {v(vLn)}")
    a(f"s_movk_i32 s20, 0x1000")
    a(f"s_lshl_b32 s21, {s(sCol)}, 11")
    a(f"v_mov_b32 {v(t[0])}, {hx(Z_CTR)}")
    a(f"v_mov_b32 {v(t[2])}, 0")
    a(f"v_mov_b32 {v(t[3])}, 0")
    a(f"ds_write_b64 {v(t[0])}, {v(t[2],2)}")

    def z_reads(k, h):
        sl = (k % P1_R) * Z_STAGE
        out = []
        for s2 in range(2):
            ss = 2 * h + s2
            out.append(f"ds_read_b128 {v(fx[h][s2],4)}, {RX[ss].at(sl)}")
            for p in range(3):
                b = sl + 16384 + ss * 3072 + p * 1024
                out.append(f"ds_read_b64_tr_b16 {v(fw[h][s2][p],2)}, {RW.at(b)}")
                out.append(f"ds_read_b64_tr_b16 {v(fw[h][s2][p]+2,2)}, {RW.at(b+256)}")
        return out

    def z_mfmas(k, h):
        acc = acc2 if k < 8 else acc1
        return [f"{MF} {v(acc[p],16)}, {v(fw[h][s2][p],4)}, {v(fx[h][s2],4)}, {'0' if (k%8,h,s2)==(0,0,0) else v(acc[p],16)}"
                for s2 in range(2) for p in range(3)]

    pairs2 = [acc2[p] + 2 * i for p in range(3) for i in range(8)]

    def after_pass1():
        stamp(a, 2)
        nonce_finish()
        a("s_nop 3")
        for ins in gelu_pk(pairs2, [GP[0], GP[0] + 2, GP[1], GP[1] + 2], K, ONE):
            a(ins)
        for x_ in pairs2[20:]:
            a(f"v_pk_mul_f32 {v(x_,2)}, {v(x_,2)}, s[16:17]")
        S, Q = [GP[0], GP[0] + 2], [GP[1], GP[1] + 2]
        for j, x_ in enumerate(pairs2):
            c = j & 1
            if j < 2:
                a(f"v_pk_mul_f32 {v(Q[c],2)}, {v(x_,2)}, {v(x_,2)}")
            else:
                a(f"v_pk_fma_f32 {v(Q[c],2)}, {v(x_,2)}, {v(x_,2)}, {v(Q[c],2)}")
                a(f"v_pk_add_f32 {v(S[c],2)}, {v(pairs2[c] if j < 4 else S[c],2)}, {v(x_,2)}")
        a(f"v_pk_add_f32 {v(S[0],2)}, {v(S[0],2)}, {v(S[1],2)}")
        a(f"v_pk_add_f32 {v(Q[0],2)}, {v(Q[0],2)}, {v(Q[1],2)}")
        a(f"v_add_f32 {v(ST)}, {v(S[0])}, {v(S[0]+1)}")
        a(f"v_add_f32 {v(ST+1)}, {v(Q[0])}, {v(Q[0]+1)}")
        a(f"v_mov_b64 {v(ST+2,2)}, {v(ST,2)}")
        a("s_nop 1")
        a(f"v_permlane32_swap_b32 {v(ST)}, {v(ST+2)}")
        a(f"v_permlane32_swap_b32 {v(ST+1)}, {v(ST+3)}")
        a(f"v_pk_add_f32 {v(ST,2)}, {v(ST,2)}, {v(ST+2,2)}")
        a(f"v_mov_b32 {v(ST+2)}, {s(sN)}")
        a(f"v_mov_b32 {v(ST+3)}, {s(sN+1)}")
        a("s_mov_b64 exec, 0xffffffff")
        a(f"buffer_store_dwordx4 {v(ST,4)}, {v(vLn)}, {srd(SRD_WS)}, s21 offen sc1")
        a("s_mov_b64 exec, -1")
        stamp(a, "a")

    lnloads = [f"buffer_load_dwordx4 {v(GP[i],4)}, {v(vLp)}, {srd(SRD_WS)}, {'0' if i < 2 else 's20'} offen offset:{(i&1)*2048} sc1" for i in range(4)]

    def ln_check():
        poll(a, lnloads, [(GP[i] + 2, GP[i] + 3, i) for i in range(4)], [None] * 4, first_issued=True)
        stamp(a, "c")

    g = GP[0]
    fin = [f"v_pk_add_f32 {v(GP[0],2)}, {v(GP[0],2)}, {v(GP[1],2)}", f"v_pk_add_f32 {v(GP[2],2)}, {v(GP[2],2)}, {v(GP[3],2)}",
           f"v_pk_add_f32 {v(g,2)}, {v(g,2)}, {v(GP[2],2)}", f"v_mov_b64 {v(g+2,2)}, {v(g,2)}",
           ["s_nop 1", f"v_permlane32_swap_b32 {v(g)}, {v(g+2)}", f"v_permlane32_swap_b32 {v(g+1)}, {v(g+3)}"],
           f"v_pk_add_f32 {v(g,2)}, {v(g,2)}, {v(g+2,2)}",
           f"v_mul_f32 {v(g)}, {hx(f2u(1.0/688))}, {v(g)}", f"v_mul_f32 {v(g+1)}, {hx(f2u(1.0/688))}, {v(g+1)}",
           f"v_fma_f32 {v(g+1)}, -{v(g)}, {v(g)}, {v(g+1)}", f"v_max_f32 {v(g+1)}, 0, {v(g+1)}",
           f"v_add_f32 {v(g+1)}, {hx(f2u(1e-5))}, {v(g+1)}", f"v_rsq_f32 {v(ST)}, {v(g+1)}",
           ["s_nop 0", f"v_mul_f32 {v(ST+1)}, -{v(g)}, {v(ST)}"]]

    def pack(acc, e):
        r = acc[e >> 1] + 8 * (e & 1)
        return [f"v_cvt_pk_bf16_f32 {v(r+i)}, {v(r+2*i)}, {v(r+2*i+1)}" for i in range(4)], r

    for e in range(6):
        r = acc2[e >> 1] + 8 * (e & 1)
        fin += [f"v_pk_fma_f32 {v(r+2*i,2)}, {v(r+2*i,2)}, {v(ST,2)}, {v(ST,2)} op_sel:[0,0,1] op_sel_hi:[1,0,1]" for i in range(4)]
        fin += pack(acc2, e)[0]
        st_ = f"buffer_store_dwordx4 {v(r,4)}, {v(vZx if e & 1 else vZe)}, {srd(SRD_WS)}, s{24+e} offen sc1"
        if e < 5:
            fin.append(st_)
        else:
            lab = a.newlabel("z2skip")
            fin.append(["s_cmp_eq_u32 s18, 0", f"s_cbranch_scc1 {lab}", st_, lab + ":"])
    k0 = OPT["early"]
    hooks = {'start': lambda: stamp(a, 1), (4, 1): nonce_issue, ('post', 7, 1): after_pass1,
             (k0 - 2, 0): lambda: [a(l) for l in lnloads]}
    fill = {}
    if k0 < 16:
        hooks[(k0, 0)] = ln_check
        fill = spread(fin, [(k, h) for k in range(k0, 16) for h in range(2)])
    uloop(a, 16, 2, z_reads, z_mfmas, OPT["rz"], hooks=hooks, fillers=fill, fpm=OPT["fz"])
    stamp(a, "b")
    if k0 >= 16:
        ln_check()
        for it in fin:
            for x_ in (it if isinstance(it, list) else [it]):
                a(x_)
    a(f"s_lshl3_add_u32 {s(sT0)}, {s(sRB)}, {s(sCol)}")
    a(f"s_lshl_b32 {s(sT0)}, {s(sT0)}, 7")
    a(f"s_add_u32 {s(sT0)}, {s(sT0)}, {hx(FZ_OFF)}")
    assert va.next <= 192
    stamp(a, "i")
    a("s_barrier")
    store_flag(a, t[4], sT0, Z_CTR)
    stamp(a, "d")
    a(f"v_mov_b32 v240, {v(vZ)}")
    a(f"s_mov_b32 s36, s22")
    a(f"s_mov_b32 s37, s23")
    a(f"s_mov_b32 s38, s18")
    a(f"s_lshl3_add_u32 {s(sT0)}, {s(sRB)}, {s(sCol)}")
    a(f"s_lshl2_add_u32 {s(sT0)}, {s(sT0)}, {s(sW)}")
    a(f"s_lshl_b32 {s(sT0)}, {s(sT0)}, 7")
    a(f"s_add_u32 s39, {s(sT0)}, {hx(F1_OFF)}")

    def z1_stores():
        lab0 = a.newlabel("noz1")
        a(f"s_cmp_eq_u32 {s(sIsZ)}, 0")
        a(f"s_cbranch_scc1 {lab0}")
        for e in range(6):
            ins, r = pack(acc1, e)
            if e == 5:
                a("s_cmp_eq_u32 s38, 0")
                a(f"s_cbranch_scc1 {lab0}")
            for x_ in ins:
                a(x_)
            a(f"buffer_store_dwordx4 {v(r,4)}, v240, {srd(SRD_WS)}, {'s36' if e < 4 else 's37'} offen offset:{(e&3)*1024} sc1")
        a.label(lab0)

    def z1_flag():
        lab0 = a.newlabel("noz1f")
        a(f"s_cmp_eq_u32 {s(sIsZ)}, 0")
        a(f"s_cbranch_scc1 {lab0}")
        store_flag(a, t[0], 39)
        a.label(lab0)

    va.release(mark0)
    a.label("L_p2cons")
    stamp(a, 3)
    sF2 = 30
    a(f"s_lshl4_add_u32 {s(sT0)}, {s(sRB)}, {s(sRole)}")
    a(f"s_lshl2_add_u32 {s(sT0)}, {s(sT0)}, {s(sW)}")
    a(f"s_lshl_b32 {s(sT0)}, {s(sT0)}, 7")
    a(f"s_add_u32 {s(sF2)}, {s(sT0)}, {hx(F2_OFF)}")
    mark2 = va.mark()
    a(f"s_cmp_eq_u32 {s(sRole)}, 15")
    a("s_cbranch_scc1 L_gate")
    a(f"s_cmp_ge_u32 {s(sRole)}, 11")
    a("s_cbranch_scc1 L_ycons")
    for b, dst in ((0, sT0), (1, sT1)):
        a(f"s_lshl_b32 {s(sT2)}, {s(sRole)}, 2")
        if b:
            a(f"s_add_u32 {s(sT2)}, {s(sT2)}, 3")
            a(f"s_min_u32 {s(sT2)}, {s(sT2)}, 42")
        a(f"s_mul_i32 {s(dst)}, {s(sT2)}, 43")
        a(f"s_sub_u32 {s(sT3)}, {s(sT2)}, 3")
        a(f"s_mul_i32 {s(sT3)}, {s(sT3)}, 52")
        a(f"s_cmp_lt_u32 {s(sT2)}, 18")
        a(f"s_cselect_b32 {s(dst)}, {s(dst)}, {s(sT3)}")
        a(f"s_lshr_b32 {s(dst)}, {s(dst)}, 8")
    vF1, pl1 = va(), va(2)
    a(f"s_sub_u32 {s(sT1)}, {s(sT1)}, {s(sT0)}")
    a(f"v_and_b32 {v(t[0])}, 1, {v(vL)}")
    a(f"v_mul_u32_u24 {v(t[0])}, {s(sT1)}, {v(t[0])}")
    a(f"v_add_u32 {v(t[0])}, {s(sT0)}, {v(t[0])}")
    a(f"v_bfe_u32 {v(t[1])}, {v(vL)}, 1, 4")
    a(f"v_lshl_add_u32 {v(t[1])}, {v(t[1])}, 3, {v(t[0])}")
    a(f"s_mov_b32 {s(sT0)}, {hx(FZ_OFF)}")
    a(f"v_lshl_add_u32 {v(t[6])}, {v(t[1])}, 7, {s(sT0)}")
    sk = a.newlabel("nopoll")
    a(f"s_cmp_lg_u32 {s(sW)}, 0")
    a(f"s_cbranch_scc1 {sk}")
    a("s_mov_b64 exec, 0xffffffff")
    a(f"buffer_load_dwordx2 {v(t[2],2)}, {v(t[6])}, {srd(SRD_WS)}, 0 offen sc1")
    a("s_mov_b64 exec, -1")
    a.label(sk)
    a(f"s_lshl_b32 {s(sT0)}, {s(sRB)}, 12")
    a(f"s_add_u32 {s(sT0)}, {s(sT0)}, {hx(F1_OFF)}")
    a(f"v_lshlrev_b32 {v(t[0])}, 2, {v(t[0])}")
    a(f"v_bfe_u32 {v(t[1])}, {v(vL)}, 1, 1")
    a(f"v_lshl_add_u32 {v(t[1])}, {s(sHi)}, 1, {v(t[1])}")
    a(f"v_add_u32 {v(t[0])}, {v(t[0])}, {v(t[1])}")
    a(f"v_lshl_add_u32 {v(vF1)}, {v(t[0])}, 7, {s(sT0)}")
    x0, x1 = va(), va()
    a(f"v_bfe_u32 {v(t[0])}, {v(vL)}, 4, 1")
    a(f"v_bfe_u32 {v(t[1])}, {v(vL)}, 2, 2")
    a(f"v_lshl_add_u32 {v(t[1])}, {v(t[0])}, 2, {v(t[1])}")
    a(f"v_lshl_add_u32 {v(t[1])}, {v(vh)}, 3, {v(t[1])}")
    a(f"v_lshlrev_b32 {v(t[1])}, 5, {v(t[1])}")
    a(f"v_lshl_add_u32 {v(t[1])}, {v(t[0])}, 11, {v(t[1])}")
    a(f"v_and_b32 {v(t[0])}, 1, {v(vL)}")
    a(f"v_lshl_add_u32 {v(t[1])}, {v(t[0])}, 4, {v(t[1])}")
    a(f"v_bfe_u32 {v(t[0])}, {v(vL)}, 1, 1")
    a(f"v_lshl_add_u32 {v(t[1])}, {v(t[0])}, 3, {v(t[1])}")
    a(f"s_lshl_b32 {s(sT0)}, {s(sLo)}, 12")
    a(f"v_add_u32 {v(x0)}, {s(sT0)}, {v(t[1])}")
    a(f"v_xor_b32 {v(x1)}, 128, {v(x0)}")
    pa = [LdsAddr(a, va, x_, 163839, GW_R * 16384) for x_ in (x0, x1)]
    a(f"s_lshl_b32 {s(sT1)}, {s(sHi)}, 13")
    pb = pat4(s(sT1), GW_R * 16384 - 1)
    K, ONE = va(2), va(2)
    gelu_consts(a, K, ONE)
    z1 = [[va(4, 4) for c in range(2)] for tt in range(2)]
    zg = va(32, 2)
    gt = va(2)
    bs = [va(2), va(2)]
    vZ = va()
    a(f"s_lshl1_add_u32 {s(sT0)}, {s(sRB)}, {s(sHi)}")
    a(f"s_lshl_b32 {s(sT1)}, {s(sT0)}, 7")
    a(f"v_lshl_add_u32 {v(t[7])}, {v(vn5)}, 1, {s(sT1)}")
    a(f"v_lshl_add_u32 {v(vZ)}, {v(vn5)}, 1, {v(vh)}")
    a(f"v_lshlrev_b32 {v(vZ)}, 4, {v(vZ)}")
    a(f"s_mul_i32 {s(sT0)}, {s(sT0)}, 88")
    a(f"s_lshl1_add_u32 {s(sT1)}, {s(sRole)}, {s(sLo)}")
    a(f"s_lshl1_add_u32 {s(sT0)}, {s(sT1)}, {s(sT0)}")
    a(f"s_lshl_b32 s16, {s(sT0)}, 10")
    a(f"s_add_u32 s17, s16, {44*1024}")
    assert va.next <= 192
    fA = [[va(4, 4) for ss in range(4)] for b in range(2)]
    fB = [[[va(4, 4) for tt in range(2)] for ss in range(4)] for b in range(2)]
    acc = [va(16, 4) for tt in range(2)]
    stamp(a, "j")
    sk = a.newlabel("nopoll")
    a(f"s_cmp_lg_u32 {s(sW)}, 0")
    a(f"s_cbranch_scc1 {sk}")
    flag_poll(a, t[6], t[2], "0xffffffff", issued=True)
    a.label(sk)
    stamp(a, "k")
    a("s_barrier")
    z1_stores()

    def g_reads(k, h):
        b = k & 1
        zs = GW_R * 16384 + (k % GZ_R) * 8192
        ws = (k % GW_R) * 16384
        out = []
        for ss in range(4):
            out.append(f"ds_read_b64_tr_b16 {v(fA[b][ss],2)}, {pa[0].at(zs+ss*512)}")
            out.append(f"ds_read_b64_tr_b16 {v(fA[b][ss]+2,2)}, {pa[1].at(zs+ss*512)}")
            for tt in range(2):
                out.append(f"ds_read_b128 {v(fB[b][ss][tt],4)}, {pb[ss].at(ws+tt*4096)}")
        return out

    def g_mfmas(k, h):
        b = k & 1
        return [f"{MF} {v(acc[tt],16)}, {v(fA[b][ss],4)}, {v(fB[b][ss][tt],4)}, {'0' if (k,ss)==(0,0) else v(acc[tt],16)}"
                for ss in range(4) for tt in range(2)]

    def z1_flag_issue():
        a("s_mov_b64 exec, 15")
        a(f"buffer_load_dwordx2 {v(pl1,2)}, {v(vF1)}, {srd(SRD_WS)}, 0 offen sc1")
        a("s_mov_b64 exec, -1")
        for tt in range(2):
            a(f"global_load_ushort {v(bs[tt])}, {v(t[7])}, {sp(P_BSP)} offset:{tt*64}")

    def z1_loads():
        flag_poll(a, vF1, pl1, "15", issued=True)
        for tt in range(2):
            for c in range(2):
                a(f"buffer_load_dwordx4 {v(z1[tt][c],4)}, {v(vZ)}, {srd(SRD_WS)}, s{16+tt} offen offset:{Z1_OFF + c*1024} sc1")
    fill = {}
    for d in range(16):
        src = z1[d >> 3][(d >> 2) & 1] + (d & 3)
        dst = zg + 2 * d
        fl = [f"v_lshlrev_b32 {v(dst)}, 16, {v(src)}", f"v_and_b32 {v(dst+1)}, 0xffff0000, {v(src)}"]
        fl += gelu_pk([dst], [gt], K, ONE)
        if d == 0:
            fl = ["s_waitcnt vmcnt(0)", f"v_lshlrev_b32 {v(bs[0])}, 16, {v(bs[0])}", f"v_lshlrev_b32 {v(bs[1])}, 16, {v(bs[1])}",
                  f"v_lshlrev_b32 {v(vZ)}, 4, {v(vL)}"] + fl
        fill[(12 + d, 0)] = fl
    uloop(a, 32, 1, g_reads, g_mfmas, 3, hooks={'start': lambda: stamp(a, 4), (1, 0): z1_flag, (5, 0): z1_flag_issue, (8, 0): z1_loads}, fillers=fill)
    stamp(a, 5)
    a("s_nop 7")
    a("s_nop 3")
    for tt in range(2):
        for c in range(2):
            o = fA[0][2 * tt + c]
            for i in range(4):
                r = acc[tt] + 8 * c + 2 * i
                a(f"v_pk_add_f32 {v(r,2)}, {v(r,2)}, {v(bs[tt],2)} op_sel_hi:[1,0]")
            for i in range(4):
                r = acc[tt] + 8 * c + 2 * i
                a(f"v_pk_mul_f32 {v(r,2)}, {v(r,2)}, {v(zg + 2*(8*tt+4*c+i),2)}")
            for i in range(4):
                r = acc[tt] + 8 * c + 2 * i
                a(f"v_cvt_pk_bf16_f32 {v(o+i)}, {v(r)}, {v(r+1)}")
            a(f"buffer_store_dwordx4 {v(o,4)}, {v(vZ)}, {srd(SRD_WS)}, s{16+tt} offen offset:{c*1024} sc1")
    stamp(a, "e")
    a("s_barrier")
    store_flag(a, t[0], sF2)
    stamp(a, "f")
    a("s_branch L_p3cons")
    va.release(mark2)
    a.label("L_ycons")
    a(f"s_lshl_b32 {s(sT0)}, {s(sRB)}, 10")
    a(f"s_add_u32 {s(sT0)}, {s(sT0)}, {hx(FH_OFF)}")
    a(f"v_lshl_add_u32 {v(t[6])}, {v(vL)}, 7, {s(sT0)}")
    a(f"s_lshl_b32 {s(sT0)}, {s(sLo)}, 13")
    pa = pat4(s(sT0), YC_R * 16384 - 1)
    a(f"v_bfe_u32 {v(t[0])}, {v(vL)}, 4, 1")
    a(f"v_bfe_u32 {v(t[1])}, {v(vL)}, 1, 1")
    a(f"v_lshl_add_u32 {v(t[0])}, {v(t[0])}, 1, {v(t[1])}")
    a(f"v_bfe_u32 {v(t[1])}, {v(vL)}, 2, 2")
    a(f"v_lshl_add_u32 {v(t[1])}, {v(vh)}, 3, {v(t[1])}")
    a(f"v_lshlrev_b32 {v(t[2])}, 2, {v(t[0])}")
    a(f"v_xor_b32 {v(t[1])}, {v(t[1])}, {v(t[2])}")
    a(f"v_lshlrev_b32 {v(t[1])}, 4, {v(t[1])}")
    a(f"v_lshl_add_u32 {v(t[1])}, {v(t[0])}, 10, {v(t[1])}")
    a(f"v_and_b32 {v(t[0])}, 1, {v(vL)}")
    a(f"v_lshl_add_u32 {v(t[1])}, {v(t[0])}, 3, {v(t[1])}")
    a(f"s_lshl_b32 {s(sT0)}, {s(sHi)}, 9")
    y0, y1 = va(), va()
    a(f"v_add_u32 {v(y0)}, {s(sT0)}, {v(t[1])}")
    a(f"v_xor_b32 {v(y1)}, 64, {v(y0)}")
    pb = [LdsAddr(a, va, y_, 163839, YC_R * 16384) for y_ in (y0, y1)]
    fA = [[[va(4, 4) for dd in range(2)] for s2 in range(2)] for b in range(2)]
    fB = [[[va(4, 4) for tt in range(2)] for s2 in range(2)] for b in range(2)]
    acc = [[va(16, 4) for dd in range(2)] for tt in range(2)]
    a(f"s_lshl_b32 {s(sT0)}, {s(sHi)}, 13")
    a(f"s_mul_i32 {s(sT1)}, {s(sLo)}, {YC_R*16384 + (16 % YH_R)*16384}")
    a(f"s_add_u32 {s(sT0)}, {s(sT0)}, {s(sT1)}")
    px = []
    for ss in range(4):
        x_ = va()
        a(f"v_xor_b32 {v(t[0])}, {32*ss}, {v(vP)}")
        a(f"v_add_u32 {v(x_)}, {s(sT0)}, {v(t[0])}")
        px.append(x_)
    dg = [[va(4, 4) for s2 in range(2)] for dd in range(2)]
    a(f"s_sub_u32 {s(sT1)}, {s(sRole)}, 11")
    a(f"s_lshl1_add_u32 {s(sT1)}, {s(sT1)}, {s(sLo)}")
    a(f"s_lshl_b32 {s(sT1)}, {s(sT1)}, 7")
    a(f"v_lshl_add_u32 {v(t[0])}, {v(vn5)}, 1, {s(sT1)}")
    a(f"global_load_ushort {v(t[4])}, {v(t[0])}, {sp(P_DSK)}")
    a(f"global_load_ushort {v(t[5])}, {v(t[0])}, {sp(P_DSK)} offset:64")
    a(f"v_and_b32 {v(t[0])}, 1, {v(vn5)}")
    a(f"v_lshlrev_b32 {v(t[0])}, 4, {v(t[0])}")
    a(f"v_lshrrev_b32 {v(t[1])}, 1, {v(vn5)}")
    a(f"v_lshlrev_b32 {v(t[2])}, 2, {v(vh)}")
    a(f"v_sub_u32 {v(t[1])}, {v(t[1])}, {v(t[2])}")
    a("s_waitcnt vmcnt(0)")
    a(f"v_lshlrev_b32 {v(t[4])}, {v(t[0])}, {v(t[4])}")
    a(f"v_lshlrev_b32 {v(t[5])}, {v(t[0])}, {v(t[5])}")
    for s2 in range(2):
        for e in range(4):
            a(f"v_cmp_eq_u32 vcc, {8*s2+e}, {v(t[1])}")
            a("s_nop 1")
            for dd in range(2):
                a(f"v_cndmask_b32 {v(dg[dd][s2]+e)}, 0, {v(t[4+dd])}, vcc")
    vA = va()
    assert va.next <= 192
    a(f"v_lshrrev_b32 {v(t[4])}, 3, {v(vL)}")
    a(f"v_and_b32 {v(t[5])}, 7, {v(vL)}")
    a(f"v_lshlrev_b32 {v(t[5])}, 4, {v(t[5])}")
    a(f"v_lshl_add_u32 {v(vA)}, {v(t[4])}, 11, {v(t[5])}")
    a(f"s_lshl1_add_u32 {s(sT0)}, {s(sRB)}, {s(sHi)}")
    a(f"s_lshl_b32 {s(sT0)}, {s(sT0)}, 17")
    a(f"s_sub_u32 {s(sT1)}, {s(sRole)}, 11")
    a(f"s_lshl1_add_u32 {s(sT1)}, {s(sT1)}, {s(sLo)}")
    a(f"s_lshl_b32 {s(sT1)}, {s(sT1)}, 8")
    a(f"s_add_u32 s16, {s(sT0)}, {s(sT1)}")
    for i in range(1, 8):
        a(f"s_add_u32 s{16+i}, s16, {i*16384}")
    stamp(a, "j")
    sk = a.newlabel("nopoll")
    a(f"s_cmp_lg_u32 {s(sW)}, 0")
    a(f"s_cbranch_scc1 {sk}")
    flag_poll(a, t[6], t[2], "0xff")
    a.label(sk)
    stamp(a, "k")
    a("s_barrier")
    z1_stores()

    def y_reads(k, h):
        if k == 16:
            return [f"ds_read_b128 {v(fB[h][s2][tt],4)}, {v(px[2*h+s2])} offset:{tt*4096}" for s2 in range(2) for tt in range(2)]
        cs = (k % YC_R) * 16384
        hs = YC_R * 16384 + (k % YH_R) * 16384
        out = []
        for s2 in range(2):
            ss = 2 * h + s2
            for i in range(2):
                out.append(f"ds_read_b128 {v(fA[h][s2][i],4)}, {pa[ss].at(cs+i*4096)}")
                b = hs + ss * 4096 + i * 256
                out.append(f"ds_read_b64_tr_b16 {v(fB[h][s2][i],2)}, {pb[0].at(b)}")
                out.append(f"ds_read_b64_tr_b16 {v(fB[h][s2][i]+2,2)}, {pb[1].at(b)}")
        return out

    def y_mfmas(k, h):
        if k == 16:
            return [f"{MF} {v(acc[tt][h],16)}, {v(dg[h][s2],4)}, {v(fB[h][s2][tt],4)}, {v(acc[tt][h],16)}" for s2 in range(2) for tt in range(2)]
        return [f"{MF} {v(acc[tt][dd],16)}, {v(fA[h][s2][dd],4)}, {v(fB[h][s2][tt],4)}, {'0' if (k,h,s2)==(0,0,0) else v(acc[tt][dd],16)}"
                for s2 in range(2) for tt in range(2) for dd in range(2)]
    uloop(a, 17, 2, y_reads, y_mfmas, 2, hooks={'start': lambda: stamp(a, 4), (0, 1): z1_flag})
    stamp(a, 5)
    a("s_nop 7")
    a("s_nop 3")
    for tt in range(2):
        for dd in range(2):
            for j in range(4):
                a(f"buffer_store_dwordx4 {v(acc[tt][dd]+4*j,4)}, {v(vA)}, {srd(SRD_O)}, s{16+4*tt+j} offen offset:{dd*128} sc1")
    stamp(a, "e")
    a("s_barrier")
    store_flag(a, t[0], sF2)
    stamp(a, "f")
    a("s_branch L_p3cons")
    va.release(mark2)
    a.label("L_gate")
    a("s_barrier")
    z1_stores()
    z1_flag()
    xr = [va(4, 4) for _ in range(16)]
    gw = va(4, 4)
    gu = va(8)
    sm = [va() for _ in range(16)]
    res = va()
    a(f"s_lshl2_add_u32 s16, {s(sRB)}, {s(sW)}")
    a(f"s_lshl_b32 s16, s16, 5")
    a(f"s_lshl_b32 {s(sT1)}, s16, 10")
    a(f"v_lshlrev_b32 {v(t[0])}, 4, {v(vL)}")
    a(f"v_add_u32 {v(t[1])}, {s(sT1)}, {v(t[0])}")
    a(f"global_load_dwordx4 {v(gw,4)}, {v(t[0])}, {sp(P_GW)}")
    a(f"v_mov_b32 {v(res)}, 0")
    a("s_waitcnt vmcnt(0)")
    for i in range(4):
        a(f"v_lshlrev_b32 {v(gu+2*i)}, 16, {v(gw+i)}")
        a(f"v_and_b32 {v(gu+2*i+1)}, 0xffff0000, {v(gw+i)}")
    a(f"v_mov_b32 {v(t[4])}, {v(vL)}")
    a(f"s_mov_b32 s17, 0")
    a.label("L_gateround")
    for i in range(16):
        if i % 4 == 0:
            a(f"s_add_u32 {s(sT2)}, s17, {i*1024}")
        a(f"buffer_load_dwordx4 {v(xr[i],4)}, {v(t[1])}, {srd(SRD_X)}, {s(sT2)} offen offset:{(i%4)*1024}")
    for i in range(16):
        a(f"s_waitcnt vmcnt({15-i})")
        for e in range(4):
            a(f"v_lshlrev_b32 {v(t[2])}, 16, {v(xr[i]+e)}")
            a(f"v_and_b32 {v(t[3])}, 0xffff0000, {v(xr[i]+e)}")
            a(f"v_pk_mul_f32 {v(t[2],2)}, {v(t[2],2)}, {v(gu+2*e,2)}")
            a(f"v_cvt_pk_bf16_f32 {v(t[2])}, {v(t[2])}, {v(t[3])}")
            a(f"v_and_b32 {v(t[3])}, 0xffff0000, {v(t[2])}")
            a(f"v_lshlrev_b32 {v(t[2])}, 16, {v(t[2])}")
            if e == 0:
                a(f"v_add_f32 {v(sm[i])}, {v(t[2])}, {v(t[3])}")
            else:
                a(f"v_add_f32 {v(sm[i])}, {v(sm[i])}, {v(t[2])}")
                a(f"v_add_f32 {v(sm[i])}, {v(sm[i])}, {v(t[3])}")
    for sh in (8, 4, 2, 1):
        for i in range(16):
            a(f"v_add_f32_dpp {v(sm[i])}, {v(sm[i])}, {v(sm[i])} row_ror:{sh} row_mask:0xf bank_mask:0xf")
    for sw in ("v_permlane16_swap_b32", "v_permlane32_swap_b32"):
        for i in range(16):
            a(f"v_mov_b32 {v(xr[0]+i)}, {v(sm[i])}")
        a("s_nop 0")
        for i in range(16):
            a(f"{sw} {v(sm[i])}, {v(xr[0]+i)}")
        for i in range(16):
            a(f"v_add_f32 {v(sm[i])}, {v(sm[i])}, {v(xr[0]+i)}")
    for i in range(16):
        a(f"v_cmp_eq_u32 vcc, {i}, {v(t[4])}")
        a("s_nop 1")
        a(f"v_cndmask_b32 {v(res)}, {v(res)}, {v(sm[i])}, vcc")
    a(f"v_subrev_u32 {v(t[4])}, 16, {v(t[4])}")
    a(f"s_add_u32 s17, s17, 16384")
    a(f"s_cmp_lt_u32 s17, 32768")
    a("s_cbranch_scc1 L_gateround")
    g2 = gw
    a(f"v_cvt_pk_bf16_f32 {v(t[2])}, {v(res)}, {v(res)}")
    a(f"v_lshlrev_b32 {v(t[2])}, 16, {v(t[2])}")
    a(f"v_mul_f32 {v(t[2])}, {hx(f2u(-LOG2E))}, {v(t[2])}")
    a(f"v_exp_f32 {v(t[2])}, {v(t[2])}")
    a("s_nop 0")
    a(f"v_add_f32 {v(t[2])}, 1.0, {v(t[2])}")
    a(f"v_rcp_f32 {v(t[2])}, {v(t[2])}")
    a("s_nop 0")
    a(f"v_cvt_pk_bf16_f32 {v(t[2])}, {v(t[2])}, {v(t[2])}")
    a(f"v_lshlrev_b32 {v(g2)}, 16, {v(t[2])}")
    a(f"v_sub_f32 {v(t[2])}, 1.0, {v(g2)}")
    a(f"v_cvt_pk_bf16_f32 {v(t[2])}, {v(t[2])}, {v(t[2])}")
    a(f"v_lshlrev_b32 {v(g2+1)}, 16, {v(t[2])}")
    a(f"s_lshl_b32 {s(sT0)}, s16, 3")
    a(f"s_add_u32 {s(sT0)}, {s(sT0)}, {hx(G_OFF)}")
    a(f"v_lshlrev_b32 {v(t[0])}, 3, {v(vL)}")
    a("s_mov_b64 exec, 0xffffffff")
    a(f"buffer_store_dwordx2 {v(g2,2)}, {v(t[0])}, {srd(SRD_WS)}, {s(sT0)} offen sc1")
    a("s_mov_b64 exec, -1")
    a("s_barrier")
    store_flag(a, t[2], sF2)

    va.release(mark2)
    a.label("L_p3cons")
    a(f"s_lshl_b32 {s(sT0)}, {s(sRB)}, 13")
    a(f"s_add_u32 {s(sT0)}, {s(sT0)}, {hx(F2_OFF)}")
    a(f"v_lshl_add_u32 {v(t[6])}, {v(vL)}, 7, {s(sT0)}")
    a(f"v_lshrrev_b32 {v(t[0])}, 2, {v(vL)}")
    a(f"v_bfe_u32 {v(t[1])}, {v(vL)}, 1, 1")
    a(f"v_cmp_ne_u32 s[20:21], {s(sTH3)}, {v(t[1])}")
    a(f"v_subrev_u32 {v(t[0])}, 11, {v(t[0])}")
    a(f"v_cmp_gt_u32 s[22:23], 4, {v(t[0])}")
    a(f"s_lshr_b32 {s(sT0)}, {s(sDT)}, 1")
    a(f"v_cmp_ne_u32 s[24:25], {s(sT0)}, {v(t[0])}")
    a(f"s_and_b32 {s(sT0)}, {s(sDT)}, 1")
    a(f"v_and_b32 {v(t[1])}, 1, {v(vL)}")
    a(f"v_cmp_ne_u32 vcc, {s(sT0)}, {v(t[1])}")
    a(f"s_or_b64 s[24:25], s[24:25], vcc")
    a(f"s_and_b64 s[22:23], s[22:23], s[24:25]")
    a(f"s_or_b64 s[20:21], s[20:21], s[22:23]")
    a(f"s_not_b64 s[20:21], s[20:21]")
    av = va(16, 4)
    g2 = va(2)
    vA_, vG_, x, y_ = va(), va(), va(), va()
    a(f"v_lshrrev_b32 {v(vG_)}, 11, {v(vO)}")
    a(f"v_lshlrev_b32 {v(vG_)}, 3, {v(vG_)}")
    a(f"v_lshrrev_b32 {v(t[4])}, 3, {v(vL)}")
    a(f"v_and_b32 {v(t[5])}, 7, {v(vL)}")
    a(f"v_lshlrev_b32 {v(t[5])}, 4, {v(t[5])}")
    a(f"v_lshl_add_u32 {v(vA_)}, {v(t[4])}, 11, {v(t[5])}")
    for j in range(1, 4):
        a(f"s_add_u32 s{15+j}, s43, {j*16384}")
    a(f"s_mov_b32 s26, {hx(G_OFF)}")
    a(f"v_bfe_u32 {v(t[0])}, {v(vL)}, 2, 2")
    a(f"v_lshl_add_u32 {v(t[1])}, {v(vh)}, 3, {v(t[0])}")
    a(f"v_lshlrev_b32 {v(t[1])}, 7, {v(t[1])}")
    a(f"v_lshrrev_b32 {v(t[0])}, 1, {v(t[0])}")
    a(f"v_xor_b32 {v(t[0])}, {s(sLo)}, {v(t[0])}")
    a(f"v_lshl_add_u32 {v(t[1])}, {v(t[0])}, 6, {v(t[1])}")
    a(f"v_bfe_u32 {v(t[0])}, {v(vL)}, 4, 1")
    a(f"v_lshl_add_u32 {v(t[1])}, {v(t[0])}, 5, {v(t[1])}")
    a(f"v_and_b32 {v(t[0])}, 3, {v(vL)}")
    a(f"v_lshl_add_u32 {v(x)}, {v(t[0])}, 3, {v(t[1])}")
    pa = LdsAddr(a, va, x, 163839, 65536)
    a(f"s_lshl_b32 {s(sT1)}, {s(sHi)}, 12")
    a(f"v_lshl_add_u32 {v(y_)}, {v(vL)}, 4, {s(sT1)}")
    pb = LdsAddr(a, va, y_, 90111)
    fA = [[va(4, 4) for ss in range(4)] for b in range(2)]
    fB = [[va(4, 4) for ss in range(4)] for b in range(2)]
    acc = va(16, 4)
    stamp(a, "g")
    sk = a.newlabel("nopoll")
    a(f"s_cmp_lg_u32 {s(sW)}, 0")
    a(f"s_cbranch_scc1 {sk}")
    flag_poll(a, t[6], t[2], "s[20:21]")
    a.label(sk)
    stamp(a, "h")
    a("s_barrier")
    for j in range(4):
        a(f"buffer_load_dwordx4 {v(av+4*j,4)}, {v(vA_)}, {srd(SRD_O)}, {'s43' if j == 0 else f's{15+j}'} offen sc1")
    a(f"buffer_load_dwordx2 {v(g2,2)}, {v(vG_)}, {srd(SRD_WS)}, s26 offen sc1")

    def reads(k, h):
        wsl = 90112 + (k % 9) * 8192
        out = []
        for ss in range(4 if k < 10 else 3):
            out.append(f"ds_read_b64_tr_b16 {v(fA[k&1][ss],2)}, {pa.at(wsl+ss*2048)}")
            out.append(f"ds_read_b64_tr_b16 {v(fA[k&1][ss]+2,2)}, {pa.at(wsl+ss*2048+512)}")
            out.append(f"ds_read_b128 {v(fB[k&1][ss],4)}, {pb.at(k*8192+ss*1024)}")
        return out

    def mfmas(k, h):
        return [f"{MF} {v(acc,16)}, {v(fA[k&1][ss],4)}, {v(fB[k&1][ss],4)}, {'0' if (k,ss)==(0,0) else v(acc,16)}" for ss in range(4 if k < 10 else 3)]
    pre = ["s_waitcnt vmcnt(0)"]
    pre += [f"v_pk_mul_f32 {v(av+2*i,2)}, {v(av+2*i,2)}, {v(g2,2)} op_sel_hi:[1,0]" for i in range(8)]
    uloop(a, 11, 1, reads, mfmas, 4, hooks={'start': lambda: stamp(a, 6)}, fillers=spread(pre, [(k, 0) for k in range(5, 10)]), fpm=1, end_barrier=False)
    a("s_nop 7")
    a("s_nop 3")
    for j in range(4):
        for e in range(2):
            r = 4 * j + 2 * e
            a(f"v_pk_fma_f32 {v(av+r,2)}, {v(acc+r,2)}, {v(g2,2)}, {v(av+r,2)} op_sel:[0,1,0] op_sel_hi:[1,1,1]")
        a(f"buffer_store_dwordx4 {v(av+4*j,4)}, {v(vO)}, {srd(SRD_O)}, 0 offen offset:{j*32}")
    endpgm(a, True)
    return va.hi


HEADER = open("cdna_kernels/" + NAME + ".s.ref").read().split("; Override launch geometry")[0]


def build(as_list=False):
    a = Asm()
    hi = gen(a)
    e1 = check_hazards(a.lines)
    e2 = check_waits(a.lines)
    print(f"vgprs {hi}, {len(a.lines)} lines, hazards {len(e1)}, waits {len(e2)}", file=sys.stderr)
    out = HEADER
    if as_list:
        out += f"; @launch kernel={KNAME} grid=(256,1,1) block=(512,1,1) lds=163840\n"
    else:
        out += "; @launch grid=(256,1,1) block=(512,1,1) lds=163840\n"
    out += '.amdgcn_target "amdgcn-amd-amdhsa--gfx950"\n.text\n'
    out += f".globl {KNAME}\n.p2align 8\n.type {KNAME},@function\n" + a.text()
    out += f""".section .rodata,"a"
.p2align 6
.amdhsa_kernel {KNAME}
  .amdhsa_next_free_vgpr 256
  .amdhsa_next_free_sgpr 102
  .amdhsa_accum_offset 256
  .amdhsa_group_segment_fixed_size 0
  .amdhsa_kernarg_size 144
  .amdhsa_user_sgpr_count 2
  .amdhsa_user_sgpr_kernarg_segment_ptr 1
  .amdhsa_system_sgpr_workgroup_id_x 1
.end_amdhsa_kernel
"""
    return out


if __name__ == "__main__":
    for o in sys.argv[2:]:
        if "=" in o:
            k, val = o.split("=", 1)
            OPT[k] = type(OPT[k])(val) if not isinstance(OPT[k], bool) else val == "1"
        elif o in OPT:
            OPT[o] = True
    dst = sys.argv[1] if len(sys.argv) > 1 else "cdna_kernels/" + NAME + ".s"
    txt = build(as_list="list" in sys.argv)
    if OPT["x"] == "noglc":
        txt = txt.replace(", 0 glc", ", 0")
    if OPT["x"] == "plainst":
        import re
        txt = re.sub(r"(buffer_store_dwordx4 .*offset:\d+) sc1", r"\1", txt)
    if OPT["x"] == "slowpoll":
        txt = txt.replace("s_sleep 6", "s_sleep 127")
    open(dst, "w").write(txt)
```

```python
import math
import struct
import sys
from asmlib import Asm, Alloc, v, s, check_hazards, check_waits

NAME = "gated_mix__ssm_conv_s5__mixer_gmlp__prompt"
KNAME = NAME + "_kernel"

Z1_OFF = 0
Z1_STRIDE = 1408
Z2N_OFF = 0x300000
H_OFF = 0x600000
P_OFF = 0xA00000
A_OFF = 0xD00000
G_OFF = 0x1100000
SC_OFF = 0x1110000
LN_OFF = 0x1180000
FZ_OFF = 0x1130000
FH_OFF = 0x1134000
F1_OFF = 0x1140000
F2_OFF = 0x11C0000
TS_OFF = 0x1150000
WS_SIZE = 0x1200000

P_X, P_LRE, P_LIM, P_BRE, P_BIM, P_CRE, P_CIM, P_LDT = 16, 18, 20, 22, 24, 26, 28, 30
P_DSK, P_BX, P_WIN, P_WSP, P_BSP, P_WOUT, P_GW, P_OUT = 32, 34, 36, 38, 40, 42, 44, 46
P_DBG, P_WS = 48, 50
LOG2E = 1.4426950408889634

sW, sRB1, sCol, sIsZ, sRB2, sRole, sDT, sTH3 = 3, 4, 5, 6, 7, 8, 9, 10
sT0, sT1, sT2, sT3, sT4 = 11, 12, 13, 14, 15
SRD_X, SRD_B, SRD_WS, SRD_PA, SRD_PB, SRD_O = 52, 56, 60, 64, 68, 72
sN = 76
sK1, sK2, sMask2 = 78, 79, 80
sE = [None, 81, 82, 83]
sM0, sCnt = 84, 85
S_TS = 86

OPT = dict(stamps=False, spin=0x40000, prof="all", x="", sleep=2, dsc=" sc1", ntt="", pf="1cw", ost="", ufirst=True, echo=0, ewg=128, rs=5, nb2=5, rg=3, p3i=5, lead=True, tlb=True, init=3, zsetup=9, dbgout=False, uearly=False, l3="", q9=21, qz=5.0, gw=7, gz=6, pre1=0, pre2=0, rz=3, fz=2, early=16, cpf=True)


def f2u(x):
    return struct.unpack("<I", struct.pack("<f", x))[0]


def hx(x):
    return hex(x & 0xFFFFFFFF)


def srd(r):
    return f"s[{r}:{r+3}]"


def sp(r):
    return f"s[{r}:{r+1}]"


PROF = {
    "all": {0: 0, 1: 1, 2: 2, 3: 3, 4: 4, 5: 5, 6: 6, 7: 7},
    "cnt": {0: 0, 7: 7},
    "g": {0: 0, 4: 1, "g3": 2, "g9": 3, "g15": 4, "g21": 5, "g26": 6, 5: 7},
    "p0": {0: 0, "p": 1, "q": 2, "r": 3, 1: 4, "s": 5, "t": 6, 2: 7},
    "h2": {0: 0, 5: 1, "e": 2, "f": 3, "g": 4, "h": 5, 6: 6, 7: 7},
    "h1": {0: 0, "b": 1, "c": 2, "i": 3, "d": 4, "j": 5, "k": 6, 4: 7},
    "clk": {0: 0, 4: 4, 5: 5, 7: 7},
    "clk1": {0: 0, 1: 1, 2: 2, 7: 7},
    "p1": {0: 0, 1: 1, 2: 2, "a": 3, "b": 4, "c": 5, "d": 6, 7: 7},
}


def stamp(a, i):
    if OPT["stamps"]:
        j = PROF[OPT["prof"]].get(i)
        if j is not None:
            a(f"s_memrealtime s[{S_TS+2*j}:{S_TS+2*j+1}]")
        if OPT["prof"] == "clk" and i in (4, 5):
            a(f"s_memtime s[{S_TS+2*(i-3)}:{S_TS+2*(i-3)+1}]")
        if OPT["prof"] == "clk1" and i in (1, 2):
            a(f"s_memtime s[{S_TS+2*(i+3)}:{S_TS+2*(i+3)+1}]")


def endpgm(a, cons=False):
    if OPT["stamps"] and OPT["echo"]:
        if cons:
            sk, lp = a.newlabel("noecho"), a.newlabel("echo")
            a("s_waitcnt vmcnt(0)")
            stamp(a, 7)
            a("s_cmp_lg_u32 s3, 0")
            a(f"s_cbranch_scc1 {sk}")
            a(f"s_cmp_lg_u32 s2, {OPT['ewg']}")
            a(f"s_cbranch_scc1 {sk}")
            a("s_waitcnt lgkmcnt(0)")
            i = OPT["echo"]
            a(f"s_sub_u32 s4, s{S_TS+2*i}, s{S_TS}")
            a("s_lshl_b32 s4, s4, 1")
            a.label(lp)
            a("s_memrealtime s[6:7]")
            a("s_waitcnt lgkmcnt(0)")
            a(f"s_sub_u32 s5, s6, s{S_TS+14}")
            a("s_cmp_lt_u32 s5, s4")
            a(f"s_cbranch_scc1 {lp}")
            a.label(sk)
        a("s_endpgm")
        return
    if OPT["stamps"] and OPT["dbgout"]:
        a("s_waitcnt vmcnt(0)")
        stamp(a, 7)
        if cons:
            sk = a.newlabel("nodbg")
            a("s_cmp_lg_u32 s3, 0")
            a(f"s_cbranch_scc1 {sk}")
            a("s_mov_b64 exec, 1")
            a("s_waitcnt lgkmcnt(0)")
            a(f"s_not_b32 s{S_TS}, s{S_TS}")
            a("v_mov_b32 v2, 0")
            for i in range(8):
                a(f"v_mov_b32 v3, s{S_TS+2*i}")
                a(f"global_atomic_umax v2, v3, s[48:49] offset:{16+4*i}")
            a.label(sk)
        a("s_endpgm")
        return
    if OPT["stamps"]:
        a("s_waitcnt vmcnt(0)")
        if OPT["prof"] not in ("h1", "p0", "g"):
            stamp(a, 7)
        a("s_mov_b64 exec, -1")
        a("v_lshrrev_b32 v0, 6, v0")
        a("s_lshl_b32 s3, s2, 3")
        a("v_add_u32 v0, s3, v0")
        a("v_lshlrev_b32 v0, 6, v0")
        a(f"s_mov_b32 s3, {hx(TS_OFF)}")
        a("s_waitcnt lgkmcnt(0)")
        for i in range(0, 8, 2):
            for e in range(4):
                a(f"v_mov_b32 v{4+e}, s{S_TS+2*i+e}")
            a(f"buffer_store_dwordx4 v[4:7], v0, {srd(SRD_WS)}, s3 offen offset:{i*8}")
            a("s_nop 1")
    a("s_endpgm")


def make_srd(a, dst, ptr, size):
    a(f"s_mov_b32 s{dst}, s{ptr}")
    a(f"s_and_b32 s{dst+1}, s{ptr+1}, 0xffff")
    a(f"s_mov_b32 s{dst+2}, {hx(size)}")
    a(f"s_mov_b32 s{dst+3}, 0x20000")


class LdsAddr:
    def __init__(self, a, va, base_reg, max_const, min_const=0):
        self.r0 = min_const // 65536
        self.regs = {}
        for r in range(self.r0, max_const // 65536 + 1):
            if r == 0:
                self.regs[r] = base_reg
            else:
                x = va()
                a(f"v_add_u32 {v(x)}, {hx(65536*r)}, {v(base_reg)}")
                self.regs[r] = x

    def at(self, const):
        r = const // 65536
        return f"{v(self.regs[r])} offset:{const - r*65536}"


class VmQ:
    def __init__(self, a, pre=0):
        self.a = a
        self.issued = pre
        self.done = 0

    def issue(self, text):
        self.a(text)
        self.issued += 1
        return self.issued

    def need(self, tok):
        if tok <= self.done:
            return
        n = min(63, self.issued - tok)
        self.a(f"s_waitcnt vmcnt({n})")
        self.done = self.issued - n


def cmul(a, d, x, y):
    a(f"v_mul_f32 {v(d)}, {v(x)}, {v(y)}")
    a(f"v_mul_f32 {v(d+1)}, {v(x)}, {v(y+1)}")
    a(f"v_fma_f32 {v(d)}, -{v(x+1)}, {v(y+1)}, {v(d)}")
    a(f"v_fma_f32 {v(d+1)}, {v(x+1)}, {v(y)}, {v(d+1)}")


def cfma(a, d, x, y, c):
    a(f"v_fma_f32 {v(d)}, {v(x)}, {v(y)}, {v(c)}")
    a(f"v_fma_f32 {v(d+1)}, {v(x)}, {v(y+1)}, {v(c+1)}")
    a(f"v_fma_f32 {v(d)}, -{v(x+1)}, {v(y+1)}, {v(d)}")
    a(f"v_fma_f32 {v(d+1)}, {v(x+1)}, {v(y)}, {v(d+1)}")


def cpow(a, d, n_f, la, lb, t):
    a(f"v_mul_f32 {v(t)}, {v(n_f)}, {v(la)}")
    a(f"v_mul_f32 {v(d+1)}, {v(n_f)}, {v(lb)}")
    a(f"v_exp_f32 {v(t)}, {v(t)}")
    a(f"v_fract_f32 {v(d+1)}, {v(d+1)}")
    a(f"v_cos_f32 {v(d)}, {v(d+1)}")
    a(f"v_sin_f32 {v(d+1)}, {v(d+1)}")
    a(f"v_mul_f32 {v(d)}, {v(d)}, {v(t)}")
    a(f"v_mul_f32 {v(d+1)}, {v(d+1)}, {v(t)}")


def pk_cfma(a, dre, dim, L, sre, sim, ure, uim):
    a(f"v_pk_fma_f32 {v(dre,2)}, {v(L,2)}, {v(sre,2)}, {v(ure,2)} op_sel:[0,0,0] op_sel_hi:[0,1,1]")
    a(f"v_pk_fma_f32 {v(dim,2)}, {v(L,2)}, {v(sim,2)}, {v(uim,2)} op_sel:[0,0,0] op_sel_hi:[0,1,1]")
    a(f"v_pk_fma_f32 {v(dre,2)}, {v(L,2)}, {v(sim,2)}, {v(dre,2)} op_sel:[1,0,0] op_sel_hi:[1,1,1] neg_lo:[1,0,0] neg_hi:[1,0,0]")
    a(f"v_pk_fma_f32 {v(dim,2)}, {v(L,2)}, {v(sre,2)}, {v(dim,2)} op_sel:[1,0,0] op_sel_hi:[1,1,1]")


def gelu_pk(pairs, temps, K, ONE):
    out = []
    n = len(temps)
    for i in range(0, len(pairs), n):
        g = pairs[i:i + n]
        tt = temps[:len(g)]
        out += [f"v_pk_mul_f32 {v(t,2)}, {v(x,2)}, {v(x,2)}" for x, t in zip(g, tt)]
        out += [f"v_pk_fma_f32 {v(t,2)}, {v(t,2)}, {v(K,2)}, {v(K,2)} op_sel:[0,0,1] op_sel_hi:[1,0,1]" for t in tt]
        out += [f"v_pk_mul_f32 {v(t,2)}, {v(t,2)}, {v(x,2)}" for x, t in zip(g, tt)]
        for t in tt:
            out += [f"v_exp_f32 {v(t)}, {v(t)}", f"v_exp_f32 {v(t+1)}, {v(t+1)}"]
        if len(tt) == 1:
            out.append("s_nop 0")
        out += [f"v_pk_add_f32 {v(t,2)}, {v(t,2)}, {v(ONE,2)} op_sel_hi:[1,0]" for t in tt]
        for t in tt:
            out += [f"v_rcp_f32 {v(t)}, {v(t)}", f"v_rcp_f32 {v(t+1)}, {v(t+1)}"]
        if len(tt) == 1:
            out.append("s_nop 0")
        out += [f"v_pk_mul_f32 {v(x,2)}, {v(x,2)}, {v(t,2)}" for x, t in zip(g, tt)]
    return out


def gelu_consts(a, K, ONE):
    k = 2.0 * math.sqrt(2.0 / math.pi)
    a(f"v_mov_b32 {v(K)}, {hx(f2u(-k*LOG2E*0.044715))}")
    a(f"v_mov_b32 {v(K+1)}, {hx(f2u(-k*LOG2E))}")
    a(f"v_mov_b32 {v(ONE)}, 1.0")
    a(f"v_mov_b32 {v(ONE+1)}, 1.0")


def poll(a, loads, tags, notneed, first_issued=False, sleep=1, cslot=None):
    PL, PD, PC = a.newlabel("poll"), a.newlabel("polled"), a.newlabel("pollchk")
    a(f"s_mov_b32 {s(sCnt)}, {hx(OPT['spin'])}")
    if first_issued:
        a(f"s_branch {PC}")
    a.label(PL)
    for l in loads:
        a(l)
    a.label(PC)
    a(f"s_mov_b64 {sp(sT3)}, -1")
    a("s_waitcnt vmcnt(0)")
    for lo, hi, li in tags:
        a(f"v_cmp_eq_u32 vcc, {s(sN)}, {v(lo)}")
        a(f"v_cmp_eq_u32 {sp(sT1)}, {s(sN+1)}, {v(hi)}")
        a(f"s_and_b64 vcc, vcc, {sp(sT1)}")
        if notneed[li] is not None:
            a(f"s_or_b64 vcc, vcc, {sp(notneed[li])}")
        a(f"s_and_b64 {sp(sT3)}, {sp(sT3)}, vcc")
    a(f"s_cmp_eq_u64 {sp(sT3)}, -1")
    a(f"s_cbranch_scc1 {PD}")
    a(f"s_sub_u32 {s(sCnt)}, {s(sCnt)}, 1")
    a(f"s_cbranch_scc1 {PD}")
    a(f"s_sleep {sleep}")
    a(f"s_branch {PL}")
    a.label(PD)
    if OPT["stamps"] and OPT["prof"] == "cnt" and cslot is not None:
        a(f"s_sub_u32 s{S_TS+2*cslot}, {hx(OPT['spin'])}, {s(sCnt)}")
        a(f"s_mov_b32 s{S_TS+2*cslot+1}, 0")


def emit_sub(a, ms, rd, rpm, fl=(), fpm=2, tail=()):
    fl = [list(g) if isinstance(g, (list, tuple)) else [g] for g in fl]
    rd = list(rd)
    tail = list(tail)
    for m in ms:
        a(m)
        n = rpm
        while n > 0 and rd:
            a(rd.pop(0))
            n -= 1
        if not rd:
            while n > 0 and tail:
                a(tail.pop(0))
                n -= 1
        n = fpm
        while n > 0 and fl:
            g = fl.pop(0)
            for x in g:
                a(x)
            n -= len(g)
    for x in rd + tail:
        a(x)
    for g in fl:
        for x in g:
            a(x)


def store_flag(a, vtmp, sOffExprReg, ctr=None, wait="vmcnt(0)"):
    a(f"v_mov_b32 {v(vtmp)}, {s(sN)}")
    a(f"v_mov_b32 {v(vtmp+1)}, {s(sN+1)}")
    if ctr is not None:
        sk = a.newlabel("notlast")
        a(f"v_mov_b32 {v(vtmp+2)}, {hx(ctr)}")
        a(f"v_mov_b32 {v(vtmp+3)}, 1")
        a("s_mov_b64 exec, 1")
        a(f"s_waitcnt {wait}")
        a(f"ds_add_rtn_u32 {v(vtmp+3)}, {v(vtmp+2)}, {v(vtmp+3)}")
        a("s_mov_b64 exec, 0xffff")
        a(f"v_lshlrev_b32 {v(vtmp+2)}, 3, v1")
        a("s_waitcnt lgkmcnt(0)")
        a(f"v_readfirstlane_b32 {s(sT4)}, {v(vtmp+3)}")
        a(f"s_cmp_lg_u32 {s(sT4)}, 3")
        a(f"s_cbranch_scc1 {sk}")
        a(f"buffer_store_dwordx2 {v(vtmp,2)}, {v(vtmp+2)}, {srd(SRD_WS)}, {s(sOffExprReg)} offen sc1")
        a.label(sk)
    else:
        a(f"v_lshlrev_b32 {v(vtmp+2)}, 3, v1")
        a("s_mov_b64 exec, 0xffff")
        a("s_waitcnt vmcnt(0)")
        a(f"buffer_store_dwordx2 {v(vtmp,2)}, {v(vtmp+2)}, {srd(SRD_WS)}, {s(sOffExprReg)} offen sc1")
    a("s_mov_b64 exec, -1")


def zero_ctr(a, t0, t1, addr):
    a(f"v_mov_b32 {v(t0)}, {hx(addr)}")
    a(f"v_mov_b32 {v(t1)}, 0")
    a(f"ds_write_b32 {v(t0)}, {v(t1)}")


U_CTR = 131072
Z_CTR = 145408
Z_STAGE, U_STAGE, P1_R = 28672, 32768, 5
YC_R, YH_R = 4, 6
sRB = sRB1
sHalf, sSlot = 81, 82


def g_plan():
    R = OPT["rs"]
    res = [2 + 3 * i for i in range(R)]
    lds = [k for k in range(32) if k not in res]
    return res, lds


def p1slot(z, k):
    return (k % P1_R) * Z_STAGE if z else ((k + 2) % P1_R) * U_STAGE


def uloop(a, nsteps, nsub, reads, mfmas, rpm, hooks=None, fillers=None, fpm=2, end_barrier=True):
    hooks = hooks or {}
    fillers = fillers or {}
    a("s_barrier")
    if 'start' in hooks:
        hooks['start']()
    for r in reads(0, 0):
        a(r)
    seq = [(k, h) for k in range(nsteps) for h in range(nsub)]
    for idx, (k, h) in enumerate(seq):
        a("s_waitcnt lgkmcnt(0)")
        if h == nsub - 1 and (k + 1 < nsteps or end_barrier):
            a("s_barrier")
        if (k, h) in hooks:
            hooks[(k, h)]()
        rd = reads(*seq[idx + 1]) if idx + 1 < len(seq) else []
        emit_sub(a, mfmas(k, h), rd, rpm, fl=fillers.get((k, h), ()), fpm=fpm)
        if ('post', k, h) in hooks:
            hooks[('post', k, h)]()


def spread(items, slots):
    out = {sl: [] for sl in slots}
    n = len(items)
    for i, it in enumerate(items):
        out[slots[i * len(slots) // n]].append(it)
    return out


def flag_poll(a, fl, pl, mask, issued=False):
    PL, PD, PC = a.newlabel("fpoll"), a.newlabel("fdone"), a.newlabel("fchk")
    a(f"s_mov_b32 {s(sCnt)}, {hx(OPT['spin'])}")
    a(f"s_mov_b64 exec, {mask}")
    if issued:
        a(f"s_branch {PC}")
    a.label(PL)
    a(f"buffer_load_dwordx2 {v(pl,2)}, {v(fl)}, {srd(SRD_WS)}, 0 offen sc1")
    a.label(PC)
    a("s_waitcnt vmcnt(0)")
    a(f"v_cmp_ne_u64 vcc, {sp(sN)}, {v(pl,2)}")
    a(f"s_and_b64 exec, exec, vcc")
    a(f"s_cbranch_execz {PD}")
    a(f"s_sub_u32 {s(sCnt)}, {s(sCnt)}, 1")
    a(f"s_cbranch_scc1 {PD}")
    a(f"s_sleep {OPT['sleep']}")
    a(f"s_branch {PL}")
    a.label(PD)
    a("s_mov_b64 exec, -1")


def s_unit0(a, dst, zt, tmp):
    a(f"s_mul_i32 {s(dst)}, {s(zt)}, 5")
    a(f"s_min_u32 {s(tmp)}, {s(zt)}, 3")
    a(f"s_add_u32 {s(dst)}, {s(dst)}, {s(tmp)}")


def gen(a):
    a.label(KNAME)
    a("s_cmp_ge_u32 s2, 256")
    a("s_cbranch_scc1 L_end")
    if OPT["stamps"]:
        for i in range(8):
            a(f"s_mov_b64 s[{S_TS+2*i}:{S_TS+2*i+1}], 0")
    stamp(a, 0)
    a("s_load_dwordx16 s[16:31], s[0:1], 0")
    a("s_load_dwordx16 s[32:47], s[0:1], 64")
    a("s_load_dwordx4 s[48:51], s[0:1], 128")
    a(f"s_memrealtime {sp(sN)}")
    vL = 1
    a(f"v_lshrrev_b32 v2, 6, v0")
    a(f"v_and_b32 {v(vL)}, 63, v0")
    a(f"v_readfirstlane_b32 {s(sW)}, v2")
    a(f"s_and_b32 {s(sHalf)}, s2, 1")
    a(f"s_bfe_u32 {s(sRB)}, s2, 0x20001")
    a(f"s_bfe_u32 {s(sT0)}, s2, 0x20003")
    a(f"s_lshl2_add_u32 {s(sRB)}, {s(sRB)}, {s(sT0)}")
    a(f"s_lshr_b32 {s(sSlot)}, s2, 5")
    a(f"s_lshr_b32 {s(sIsZ)}, {s(sSlot)}, 2")
    a(f"s_and_b32 {s(sCol)}, {s(sSlot)}, 3")
    a(f"s_lshl2_add_u32 {s(sCol)}, {s(sHalf)}, {s(sCol)}")
    a(f"s_lshl1_add_u32 {s(sK1)}, {s(sRB)}, {s(sCol)}")
    a(f"s_lshl2_add_u32 {s(sK1)}, {s(sIsZ)}, {s(sK1)}")
    a(f"s_mul_i32 {s(sRole)}, {s(sHalf)}, 6")
    a(f"s_add_u32 {s(sRole)}, {s(sRole)}, {s(sSlot)}")
    a(f"s_cmp_eq_u32 {s(sRole)}, 11")
    a(f"s_cselect_b32 {s(sRole)}, 15, {s(sRole)}")
    a(f"s_lshl1_add_u32 {s(sT0)}, {s(sHalf)}, {s(sSlot)}")
    a(f"s_add_u32 {s(sT0)}, {s(sT0)}, 5")
    a(f"s_cmp_ge_u32 {s(sSlot)}, 6")
    a(f"s_cselect_b32 {s(sRole)}, {s(sT0)}, {s(sRole)}")
    a(f"s_and_b32 {s(sTH3)}, {s(sSlot)}, 1")
    a(f"s_lshr_b32 {s(sDT)}, {s(sSlot)}, 1")
    a(f"s_lshl2_add_u32 {s(sDT)}, {s(sHalf)}, {s(sDT)}")
    a(f"s_cmp_lt_u32 {s(sW)}, 4")
    a("s_cbranch_scc1 L_cons")
    gen_loader(a, vL)
    a.label("L_cons")
    hi_c = gen_consumer(a, vL)
    a.label("L_end")
    a("s_endpgm")
    return hi_c


def gen_loader(a, vL):
    GW_R, GZ_R = OPT["gw"], OPT["gz"]
    va = Alloc(2, 32, 'v')
    t = [va() for _ in range(4)]
    vX = [va() for _ in range(4)]
    vB = [va() for _ in range(4)]
    vPg = [va() for _ in range(4)]
    vLin, vOg, vOg1 = [va() for _ in range(3)]
    sLW = sW
    sKa = sT3
    sKx, sKw, sKp, sKd, sM1 = 20, 21, 22, 23, 30
    a(f"s_sub_u32 {s(sLW)}, {s(sW)}, 4")
    a(f"s_lshl_b32 {s(sM0)}, {s(sLW)}, 12")
    vCh = t[3]
    a(f"v_and_b32 {v(t[0])}, 7, {v(vL)}")
    a(f"v_lshrrev_b32 {v(t[1])}, 4, {v(vL)}")
    a(f"v_xor_b32 {v(vCh)}, {v(t[0])}, {v(t[1])}")
    a(f"v_lshlrev_b32 {v(vCh)}, 4, {v(vCh)}")
    a(f"v_lshrrev_b32 {v(t[2])}, 3, {v(vL)}")
    a(f"s_cmp_eq_u32 {s(sIsZ)}, 1")
    a("s_cbranch_scc1 L_zload")

    def rows4(dst, rowreg, sh, step=8):
        a(f"v_lshl_add_u32 {v(dst[0])}, {v(rowreg)}, {sh}, {v(vCh)}")
        a(f"v_xor_b32 {v(dst[1])}, 64, {v(dst[0])}")
        a(f"v_add_u32 {v(dst[2])}, {((2*step)<<sh)-2048}, {v(dst[0])}")
        a(f"v_add_u32 {v(dst[3])}, {((3*step)<<sh)-3072}, {v(dst[1])}")
        a(f"v_add_u32 {v(dst[1])}, {(step<<sh)-1024}, {v(dst[1])}")

    def setup_rest():
        make_srd(a, SRD_WS, P_WS, WS_SIZE)
        make_srd(a, SRD_O, P_WOUT, 688 * 1024)
        make_srd(a, SRD_PB, P_CIM, 512 * 1024)
        ly, ld = a.newlabel("ysetup"), a.newlabel("setupdone")
        a(f"v_lshrrev_b32 {v(t[0])}, 3, {v(vL)}")
        a(f"s_lshl_b32 {s(sT0)}, {s(sLW)}, 5")
        a(f"v_add_u32 {v(t[0])}, {s(sT0)}, {v(t[0])}")
        a(f"s_cmp_ge_u32 {s(sSlot)}, 6")
        a(f"s_cbranch_scc1 {ly}")
        make_srd(a, SRD_PA, P_WSP, 2048 * 4096)
        a(f"s_lshl_b32 {s(sT0)}, {s(sRB)}, 7")
        a(f"v_add_u32 {v(t[0])}, {s(sT0)}, {v(t[0])}")
        rows4(vPg, t[0], 12)
        a(f"s_movk_i32 {s(sMask2)}, {31*128}")
        a(f"s_mul_i32 {s(sKp)}, {s(sSlot)}, {4*128}")
        for j in range(4):
            a(f"s_add_u32 {s(sT0)}, {s(sRB)}, {j if OPT['lead'] else 0}")
            a(f"s_and_b32 {s(sT0)}, {s(sT0)}, 3")
            if OPT['lead']:
                a(f"s_lshl_b32 s{16+j}, {s(sT0)}, 7")
            else:
                a(f"s_movk_i32 s{16+j}, {j*128}")
        a(f"s_lshl_b32 {s(sT0)}, {s(sRole)}, 18")
        a(f"s_lshl_b32 {s(sT1)}, {s(sLW)}, 11")
        a(f"s_add_u32 {s(sT0)}, {s(sT0)}, {s(sT1)}")
        a(f"s_add_u32 {s(sT0)}, {s(sT0)}, {hx(Z2N_OFF)}")
        a(f"v_lshl_add_u32 {v(vLin)}, {v(vL)}, 4, {s(sT0)}")
        a(f"s_branch {ld}")
        a.label(ly)
        make_srd(a, SRD_PA, P_CRE, 512 * 1024)
        a(f"s_sub_u32 {s(sT1)}, {s(sRole)}, 11")
        a(f"s_lshl_b32 {s(sT0)}, {s(sT1)}, 7")
        a(f"v_add_u32 {v(t[0])}, {s(sT0)}, {v(t[0])}")
        rows4(vPg, t[0], 10)
        a(f"s_movk_i32 {s(sMask2)}, {7*128}")
        a(f"s_lshl_b32 {s(sKp)}, {s(sTH3)}, 9")
        a(f"s_lshl_b32 {s(sT0)}, {s(sRB)}, 18")
        a(f"s_add_u32 {s(sT0)}, {s(sT0)}, {s(sM0)}")
        a(f"s_add_u32 {s(sT0)}, {s(sT0)}, {hx(H_OFF)}")
        a(f"v_lshl_add_u32 {v(vLin)}, {v(vL)}, 4, {s(sT0)}")
        a.label(ld)
        a(f"s_mov_b32 {s(sKd)}, {s(sKp)}")
        a(f"v_lshrrev_b32 {v(t[0])}, 3, {v(vL)}")
        a(f"s_lshl_b32 {s(sT0)}, {s(sLW)}, 4")
        a(f"v_add_u32 {v(t[0])}, {s(sT0)}, {v(t[0])}")
        a(f"v_and_b32 {v(t[1])}, 7, {v(vL)}")
        a(f"v_bfe_u32 {v(t[2])}, {v(vL)}, 4, 1")
        a(f"v_lshlrev_b32 {v(t[2])}, 2, {v(t[2])}")
        a(f"v_xor_b32 {v(t[1])}, {v(t[1])}, {v(t[2])}")
        a(f"s_lshl_b32 {s(sT0)}, {s(sDT)}, 7")
        a(f"v_lshl_add_u32 {v(vOg)}, {v(t[1])}, 4, {s(sT0)}")
        a(f"v_lshl_add_u32 {v(vOg)}, {v(t[0])}, 10, {v(vOg)}")
        a(f"v_add_u32 {v(vOg1)}, {8192-1024}, {v(vOg)}")

    def pf_setup():
        a(f"s_lshr_b32 {s(sT0)}, s2, 3")
        a(f"s_lshl2_add_u32 {s(sT0)}, {s(sT0)}, {s(sLW)}")
        a(f"s_mul_i32 {s(sT1)}, {s(sT0)}, {8*2752}")
        a(f"s_mul_i32 {s(sT2)}, {s(sHalf)}, 736")
        a(f"s_add_u32 {s(sT1)}, {s(sT1)}, {s(sT2)}")
        a(f"v_min_u32 {v(t[2])}, 47, {v(vL)}")
        a(f"v_lshl_add_u32 {v(t[2])}, {v(t[2])}, 4, {s(sT1)}")
        a(f"s_lshl_b32 {s(sT1)}, {s(sT0)}, 15")
        a(f"s_lshr_b32 {s(sT2)}, {s(sRB)}, 2")
        a(f"s_lshl_b32 {s(sT2)}, {s(sT2)}, 21")
        a(f"s_add_u32 {s(sT1)}, {s(sT1)}, {s(sT2)}")
        a(f"v_lshl_add_u32 {v(t[1])}, {v(vL)}, 4, {s(sT1)}")
        a(f"s_cmp_lt_u32 {s(sT0)}, 32")
        a(f"s_cselect_b32 s24, s{P_CRE}, s{P_CIM}")
        a(f"s_cselect_b32 s25, s{P_CRE+1}, s{P_CIM+1}")
        a(f"s_and_b32 {s(sT0)}, {s(sT0)}, 31")
        a(f"s_lshl_b32 {s(sT0)}, {s(sT0)}, 13")
        a(f"s_lshl_b32 {s(sT1)}, {s(sHalf)}, 18")
        a(f"s_add_u32 {s(sT0)}, {s(sT0)}, {s(sT1)}")
        a(f"v_lshl_add_u32 {v(t[0])}, {v(vL)}, 4, {s(sT0)}")

    def pf(q, kind, n):
        for e in range(n):
            d = 32 + 4 * (e % 8)
            if kind == '1':
                q.issue(f"global_load_dwordx4 {v(d,4)}, {v(t[2])}, {sp(P_WIN)}")
                a(f"v_add_u32 {v(t[2])}, 2752, {v(t[2])}")
            else:
                r, base, pol = (t[1], sp(P_WSP), OPT['ntt']) if kind == 'w' else (t[0], "s[24:25]", "")
                q.issue(f"global_load_dwordx4 {v(d,4)}, {v(r)}, {base} offset:{(e%4)*1024}{pol}")
                if e % 4 == 3:
                    a(f"v_add_u32 {v(r)}, 4096, {v(r)}")

    def gw_dma(q, k, slot):
        a(f"s_add_u32 {s(sKa)}, {s(sKp)}, {(k >> 2) * 512}")
        a(f"s_and_b32 {s(sKa)}, {s(sKa)}, {s(sMask2)}")
        a(f"s_add_u32 m0, {s(sM0)}, {slot * 16384}")
        a(f"s_add_u32 {s(sKa)}, {s(sKa)}, s{16 + (k & 3)}")
        tok = None
        for e in range(4):
            tok = q.issue(f"buffer_load_dwordx4 {v(vPg[e])}, {srd(SRD_PA)}, {s(sKa)} offen offset:{e*1024} lds")
        return tok

    def g_first(q):
        res, lds = g_plan()
        for i, k in enumerate(res):
            gw_dma(q, k, i)
        for i in range(len(res), GW_R):
            gw_dma(q, lds[i], i)

    def p1_loader(kind):
        q = VmQ(a)
        z = kind == 'z'
        nst = 16 if z else 8
        stage = Z_STAGE if z else U_STAGE
        tok = {}
        a(f"s_and_b32 {s(sKx)}, {s(sK1)}, 7")
        if z:
            a(f"s_mul_i32 {s(sKw)}, {s(sKx)}, {64*2752}")
            a(f"s_mov_b32 s24, {64*2752}")
            a(f"s_mov_b32 s25, {8*64*2752}")
            a(f"s_mul_i32 {s(sM1)}, {s(sLW)}, 3072")
        a(f"s_lshl_b32 {s(sKx)}, {s(sKx)}, 7")

        def issue_x(k):
            slot = p1slot(z, k)
            a(f"s_add_u32 m0, {s(sM0)}, {slot}")
            a(f"s_and_b32 {s(sKx)}, {s(sKx)}, 0x380")
            for e in range(4):
                q.issue(f"buffer_load_dwordx4 {v(vX[e])}, {srd(SRD_X)}, {s(sKx)} offen offset:{e*1024} lds")
            return 4

        def issue_w(k):
            slot = p1slot(z, k)
            a(f"s_add_u32 m0, {s(sM1 if z else sM0)}, {slot+16384}")
            if z:
                if k == 8:
                    for p in range(3):
                        a(f"v_subrev_u32 {v(vB[p])}, 1376, {v(vB[p])}")
                a(f"s_addk_i32 {s(sKx)}, 128")
                for p in range(3):
                    tok[k] = q.issue(f"buffer_load_dwordx4 {v(vB[p])}, {srd(SRD_B)}, {s(sKw)} offen offset:{p*1024} lds")
                a(f"s_add_u32 {s(sKw)}, {s(sKw)}, s24")
                a(f"s_cmp_eq_u32 {s(sKw)}, s25")
                a(f"s_cselect_b32 {s(sKw)}, 0, {s(sKw)}")
                return 3
            a("s_nop 0")
            for e in range(4):
                tok[k] = q.issue(f"buffer_load_dwordx4 {v(vB[e])}, {srd(SRD_B)}, {s(sKx)} offen offset:{e*1024} lds")
            a(f"s_addk_i32 {s(sKx)}, 128")
            return 4

        items = [(k, f) for k in range(nst) for f in (issue_x, issue_w)]
        ni = OPT["init"]
        stamp(a, "p")
        for k, f in items[:2 * ni]:
            f(k)
            if k == 0 and f == issue_w:
                stamp(a, "q")
        stamp(a, "r")
        items = items[2 * ni:]
        q.need(tok[0])
        a("s_barrier")
        stamp(a, 1)
        budget = 0.0
        for k in range(1, nst + 1):
            budget += (OPT["q9"] if (z and k == 9) else (OPT["qz"] if z else 8))
            if items and items[0][0] < 8:
                budget = max(budget, 7 if z else 8)
            while items and items[0][0] <= k - 2 + P1_R and (budget >= 3 or items[0][0] <= k + 1):
                kk, f = items.pop(0)
                budget -= f(kk)
            budget = min(budget, 3)
            if k == (OPT["zsetup"] if z else 6):
                setup_rest()
                if not z:
                    pf_setup()
            if not z:
                if k == 6 and '1' in OPT["pf"]:
                    pf(q, '1', 4)
                if k == 7 and '1' in OPT["pf"]:
                    pf(q, '1', 4)
                if k in (7, 8) and 'c' in OPT["pf"]:
                    pf(q, 'c', 4)
            if k < nst:
                q.need(tok[k])
            a("s_barrier")
            if k in (2, 4):
                stamp(a, "st"[k // 2 - 1])
            if k in ((9, 11, 13) if z else (4, 5, 6)):
                stamp(a, "abc"[((9, 11, 13) if z else (4, 5, 6)).index(k)])
        stamp(a, 2)
        if not z and OPT["ufirst"]:
            g_first(q)
        a("s_branch L_p2load")

    a(f"s_and_b32 {s(sT1)}, {s(sLW)}, 1")
    a(f"s_lshl_b32 {s(sT1)}, {s(sT1)}, 5")
    a(f"s_lshl_b32 {s(sT0)}, {s(sRB)}, 7")
    a(f"s_add_u32 {s(sT0)}, {s(sT0)}, {s(sT1)}")
    a(f"s_lshr_b32 {s(sT2)}, {s(sLW)}, 1")
    a(f"s_lshl3_add_u32 {s(sT0)}, {s(sT2)}, {s(sT0)}")
    a(f"v_lshrrev_b32 {v(t[0])}, 5, {v(vL)}")
    a(f"v_bfe_u32 {v(t[1])}, {v(vL)}, 3, 1")
    a(f"v_lshl_add_u32 {v(t[0])}, {v(t[0])}, 2, {v(t[1])}")
    a(f"v_bfe_u32 {v(t[1])}, {v(vL)}, 4, 1")
    a(f"v_lshl_add_u32 {v(t[0])}, {v(t[0])}, 4, {v(t[1])}")
    a(f"v_add_u32 {v(t[0])}, {s(sT0)}, {v(t[0])}")
    rows4(vX, t[0], 10, step=2)
    a(f"s_lshl_b32 {s(sT0)}, {s(sCol)}, 6")
    a(f"s_add_u32 {s(sT0)}, {s(sT0)}, {s(sT1)}")
    a(f"v_add_u32 {v(t[0])}, {s(sT0)}, {v(t[2])}")
    rows4(vB, t[0], 10)
    a("s_waitcnt lgkmcnt(0)")
    make_srd(a, SRD_X, P_X, 2048 * 1024)
    a(f"s_cmp_lt_u32 {s(sLW)}, 2")
    a(f"s_cselect_b32 s{SRD_B}, s{P_BRE}, s{P_BIM}")
    a(f"s_cselect_b32 s{SRD_B+1}, s{P_BRE+1}, s{P_BIM+1}")
    a(f"s_and_b32 s{SRD_B+1}, s{SRD_B+1}, 0xffff")
    a(f"s_mov_b32 s{SRD_B+2}, {hx(512*1024)}")
    a(f"s_mov_b32 s{SRD_B+3}, 0x20000")
    p1_loader('u')
    a.label("L_zload")
    a(f"s_lshl_b32 {s(sT0)}, {s(sRB)}, 7")
    a(f"s_lshl_b32 {s(sT1)}, {s(sLW)}, 5")
    a(f"s_add_u32 {s(sT0)}, {s(sT0)}, {s(sT1)}")
    a(f"v_add_u32 {v(t[0])}, {s(sT0)}, {v(t[2])}")
    rows4(vX, t[0], 10)
    s_unit0(a, sT0, sCol, sT1)
    a(f"s_lshl_b32 {s(sT0)}, {s(sT0)}, 5")
    a(f"s_add_u32 {s(sT0)}, {s(sT0)}, {2048 + 1376}")
    a(f"s_mul_i32 {s(sT1)}, {s(sLW)}, {16*2752}")
    a(f"s_add_u32 {s(sT0)}, {s(sT0)}, {s(sT1)}")
    for e in range(3):
        a(f"v_add_u32 {v(t[0])}, {64*e}, {v(vL)}")
        a(f"v_mul_u32_u24 {v(t[1])}, 171, {v(t[0])}")
        a(f"v_lshrrev_b32 {v(t[1])}, 11, {v(t[1])}")
        a(f"v_lshlrev_b32 {v(t[0])}, 4, {v(t[0])}")
        a(f"v_mul_u32_u24 {v(t[1])}, {2752-192}, {v(t[1])}")
        a(f"v_add3_u32 {v(vB[e])}, {v(t[0])}, {v(t[1])}, {s(sT0)}")
        if e:
            a(f"v_subrev_u32 {v(vB[e])}, {1024*e}, {v(vB[e])}")
    a("s_waitcnt lgkmcnt(0)")
    make_srd(a, SRD_X, P_X, 2048 * 1024)
    a(f"s_sub_u32 s{SRD_B}, s{P_WIN}, 2048")
    a(f"s_subb_u32 s{SRD_B+1}, s{P_WIN+1}, 0")
    a(f"s_and_b32 s{SRD_B+1}, s{SRD_B+1}, 0xffff")
    a(f"s_mov_b32 s{SRD_B+2}, {hx(512*2752 + 2048)}")
    a(f"s_mov_b32 s{SRD_B+3}, 0x20000")
    p1_loader('z')

    a.label("L_p2load")
    a(f"s_lshr_b32 {s(sM1)}, {s(sM0)}, 1")
    a(f"s_cmp_eq_u32 {s(sRole)}, 15")
    a("s_cbranch_scc1 L_gateload")
    a(f"s_cmp_ge_u32 {s(sRole)}, 11")
    a("s_cbranch_scc1 L_yload")

    def g_loader():
        res, lds = g_plan()
        R = len(res)
        q = VmQ(a)
        tokw, tokd = {}, {}

        def d_dma(k):
            a(f"s_add_u32 {s(sKa)}, {s(sKd)}, s{16 + (k & 3)}")
            a(f"s_add_u32 m0, {s(sM1)}, {GW_R * 16384 + (k % GZ_R) * 8192}")
            a(f"s_lshl_b32 {s(sKa)}, {s(sKa)}, 6")
            for e in range(2):
                tokd[k] = q.issue(f"buffer_load_dwordx4 {v(vLin)}, {srd(SRD_WS)}, {s(sKa)} offen offset:{e*1024}{OPT['dsc']} lds")
            if k & 3 == 3:
                a(f"s_addk_i32 {s(sKd)}, 512")
                a(f"s_and_b32 {s(sKd)}, {s(sKd)}, {s(sMask2)}")

        a("s_barrier")
        if OPT["ufirst"]:
            l0 = a.newlabel("uf")
            a(f"s_cmp_eq_u32 {s(sIsZ)}, 0")
            a(f"s_cbranch_scc1 {l0}")
        g_first(q)
        if OPT["ufirst"]:
            a.label(l0)
        for i in range(R, GW_R):
            tokw[lds[i]] = q.issued
        if R:
            q.need(4 * R)
            a("s_barrier")
            a("s_barrier")
            for i in range(min(R, OPT["nb2"])):
                tokw[lds[i]] = gw_dma(q, lds[i], i)
        if 'w' in OPT["pf"]:
            l1 = a.newlabel("nowpf")
            a(f"s_cmp_eq_u32 {s(sIsZ)}, 1")
            a(f"s_cbranch_scc1 {l1}")
            a(f"s_lshl2_add_u32 {s(sT0)}, {s(sSlot)}, {s(sLW)}")
            a(f"s_lshl4_add_u32 {s(sT0)}, {s(sRB)}, {s(sT0)}")
            a(f"s_lshl_b32 {s(sT0)}, {s(sT0)}, 15")
            a(f"s_add_u32 {s(sT0)}, {s(sT0)}, {24*128}")
            a(f"v_lshlrev_b32 {v(t[0])}, 4, {v(vL)}")
            for e in range(8):
                a(f"buffer_load_dwordx4 {v(32+4*e,4)}, {v(t[0])}, {srd(SRD_PA)}, {s(sT0)} offen")
                a(f"s_addk_i32 {s(sT0)}, 0x1000")
            a.label(l1)
        a("s_barrier")
        stamp(a, 3)
        for k in range(GZ_R):
            d_dma(k)
            if k >= 2 and OPT["nb2"] + k - 2 < R:
                i = OPT["nb2"] + k - 2
                tokw[lds[i]] = gw_dma(q, lds[i], i)
        q.need(tokd[0])
        q.need(tokw[0])
        a("s_barrier")
        stamp(a, 4)
        for k in range(32):
            if k >= 1:
                if k - 1 + GZ_R < 32:
                    d_dma(k - 1 + GZ_R)
                if k - 1 in lds and lds.index(k - 1) + GW_R < len(lds):
                    i = lds.index(k - 1) + GW_R
                    tokw[lds[i]] = gw_dma(q, lds[i], i % GW_R)
            if k + 1 < 32:
                q.need(max(tokd[k + 1], tokw.get(k + 1, 0)))
            a("s_barrier")
            if k in (3, 9, 15, 21, 26):
                stamp(a, f"g{k}")
        stamp(a, 5)
        a("s_branch L_p3load")

    def y_loader():
        n, wr, dr = 17, YC_R, YH_R
        a(f"v_lshrrev_b32 {v(t[0])}, 3, {v(vL)}")
        a(f"s_lshl2_add_u32 {s(sT0)}, {s(sRB)}, {s(sLW)}")
        a(f"s_lshl_b32 {s(sT0)}, {s(sT0)}, 5")
        a(f"v_add_u32 {v(t[0])}, {s(sT0)}, {v(t[0])}")
        rows4(vX, t[0], 10)
        a(f"s_sub_u32 s24, {s(sRole)}, 11")
        a(f"s_lshl_b32 s24, s24, 8")
        a(f"s_add_u32 s25, s24, 128")
        q = VmQ(a)
        tokw, tokd = {}, {}

        def x_dma(k, slot, so, tk):
            a(f"s_add_u32 m0, {s(sM0)}, {slot}")
            a("s_nop 0")
            for e in range(4):
                tk[k] = q.issue(f"buffer_load_dwordx4 {v(vX[e])}, {srd(SRD_X)}, {so} offen offset:{e*1024} lds")

        def w_dma(k):
            if k == 16:
                return x_dma(k, (k % wr) * 16384, "s24", tokw)
            sr = SRD_PA if k < 8 else SRD_PB
            a(f"s_add_u32 m0, {s(sM0)}, {(k % wr) * 16384}")
            a(f"s_and_b32 {s(sKp)}, {s(sKp)}, {s(sMask2)}")
            for e in range(4):
                tokw[k] = q.issue(f"buffer_load_dwordx4 {v(vPg[e])}, {srd(sr)}, {s(sKp)} offen offset:{e*1024} lds")
            a(f"s_addk_i32 {s(sKp)}, 128")

        def d_dma(k):
            slot = wr * 16384 + (k % dr) * 16384
            if k == 16:
                return x_dma(k, slot, "s25", tokd)
            a(f"s_and_b32 {s(sKd)}, {s(sKd)}, {s(sMask2)}")
            a(f"s_add_u32 m0, {s(sM0)}, {slot}")
            a(f"s_lshl_b32 {s(sKa)}, {s(sKd)}, 7")
            if k >= 8:
                a(f"s_add_u32 {s(sKa)}, {s(sKa)}, {8*16384}")
            for e in range(4):
                tokd[k] = q.issue(f"buffer_load_dwordx4 {v(vLin)}, {srd(SRD_WS)}, {s(sKa)} offen offset:{e*1024}{OPT['dsc']} lds")
            a(f"s_addk_i32 {s(sKd)}, 128")

        a("s_barrier")
        for k in range(wr):
            w_dma(k)
        a("s_barrier")
        stamp(a, 3)
        for k in range(3):
            d_dma(k)
        q.need(tokd[0])
        a("s_barrier")
        stamp(a, 4)
        nd = 3
        for k in range(n):
            for _ in range(2):
                if nd < n and nd <= k - 1 + dr:
                    d_dma(nd)
                    nd += 1
            if k >= 1 and k - 1 + wr < n:
                w_dma(k - 1 + wr)
            if k == 14:
                a(f"s_and_b32 {s(sT0)}, {s(sRB)}, 3")
                a(f"s_lshl2_add_u32 {s(sT0)}, {s(sTH3)}, {s(sT0)}")
                a(f"s_lshl2_add_u32 {s(sT0)}, {s(sT0)}, {s(sLW)}")
                a(f"s_mul_i32 {s(sT0)}, {s(sT0)}, {22*1024}")
                a(f"s_lshl_b32 {s(sT1)}, {s(sHalf)}, 9")
                a(f"s_add_u32 {s(sT0)}, {s(sT0)}, {s(sT1)}")
                a(f"v_lshrrev_b32 {v(t[0])}, 5, {v(vL)}")
                a(f"v_and_b32 {v(t[1])}, 31, {v(vL)}")
                a(f"v_lshlrev_b32 {v(t[1])}, 4, {v(t[1])}")
                a(f"v_lshl_add_u32 {v(t[0])}, {v(t[0])}, 10, {v(t[1])}")
            if k >= 14:
                for e in range(4 if k < 16 else 3):
                    q.issue(f"buffer_load_dwordx4 {v(32+4*e,4)}, {v(t[0])}, {srd(SRD_O)}, {s(sT0)} offen")
                    a(f"s_addk_i32 {s(sT0)}, 0x800")
            if k + 1 < n:
                q.need(max(tokd[k + 1], tokw[k + 1]))
            a("s_barrier")
        stamp(a, 5)
        a("s_branch L_p3load")

    g_loader()
    a.label("L_yload")
    y_loader()
    a.label("L_gateload")
    a("s_barrier")
    a("s_barrier")
    a.label("L_p3load")
    q = VmQ(a)
    tokw, tok = {}, {}

    def wo_dma(j):
        a(f"s_add_u32 m0, {s(sM1)}, {90112 + (j % 9) * 8192}")
        a(f"s_lshl_b32 {s(sKa)}, {s(sKp)}, 4")
        q.issue(f"buffer_load_dwordx4 {v(vOg)}, {srd(SRD_O)}, {s(sKa)} offen lds")
        tokw[j] = q.issue(f"buffer_load_dwordx4 {v(vOg1)}, {srd(SRD_O)}, {s(sKa)} offen offset:1024 lds")
        a(f"s_addk_i32 {s(sKp)}, 0x1000")
        a(f"s_cmp_eq_u32 {s(sKp)}, s24")
        a(f"s_cselect_b32 {s(sKp)}, 0, {s(sKp)}")
    a(f"s_lshl1_add_u32 {s(sT0)}, {s(sRB)}, {s(sTH3)}")
    a(f"s_lshr_b32 {s(sT1)}, {s(sLW)}, 1")
    a(f"s_lshl1_add_u32 {s(sT0)}, {s(sT0)}, {s(sT1)}")
    a(f"s_mul_i32 {s(sT0)}, {s(sT0)}, {44*1024}")
    a(f"s_and_b32 {s(sT1)}, {s(sLW)}, 1")
    a(f"s_lshl_b32 {s(sT1)}, {s(sT1)}, 11")
    a(f"s_add_u32 {s(sT0)}, {s(sT0)}, {s(sT1)}")
    a(f"v_lshl_add_u32 {v(vLin)}, {v(vL)}, 4, {s(sT0)}")
    a(f"s_and_b32 {s(sKp)}, {s(sDT)}, 3")
    a(f"s_mul_i32 {s(sKp)}, {s(sKp)}, {3*4096 if OPT['lead'] else 0}")
    a(f"s_mov_b32 {s(sKd)}, {s(sKp)}")
    a(f"s_mov_b32 s24, {11*4096}")
    for j in range(9):
        if j == OPT["pre2"]:
            a("s_barrier")
        wo_dma(j)
    stamp(a, "e")
    a("s_barrier")
    stamp(a, "h")
    def p_dma(k):
        a(f"s_add_u32 m0, {s(sM1)}, {k*8192}")
        a(f"s_cmp_eq_u32 {s(sKd)}, s24")
        a(f"s_cselect_b32 {s(sKd)}, 0, {s(sKd)}")
        for e in range(2):
            tok[k] = q.issue(f"buffer_load_dwordx4 {v(vLin)}, {srd(SRD_WS)}, {s(sKd)} offen offset:{e*1024}{OPT['dsc']} lds")
        a(f"s_addk_i32 {s(sKd)}, 0x1000")
    npd = OPT["p3i"]
    for k in range(npd):
        p_dma(k)
    for k in range(11):
        q.need(max(tok[k], tokw[k]))
        a("s_barrier")
        if k == 0:
            stamp(a, 6)
        if k in (1, 2):
            wo_dma(8 + k)
        for _ in range(2 if k < 2 else 1):
            if npd < 11:
                p_dma(npd)
                npd += 1
    endpgm(a)


def gen_consumer(a, vL):
    GW_R, GZ_R = OPT["gw"], OPT["gz"]
    MF = "v_mfma_f32_32x32x16_bf16"
    va = Alloc(2, 240, 'v')
    t = [va() for _ in range(8)]
    vN2 = va(2)
    vn5, vh, vP, vO = va(), va(), va(), va()
    sLo, sHi = 34, 35
    a(f"v_and_b32 {v(vn5)}, 31, {v(vL)}")
    a(f"v_lshrrev_b32 {v(vh)}, 5, {v(vL)}")
    a(f"v_bfe_u32 {v(t[0])}, {v(vL)}, 1, 3")
    a(f"v_xor_b32 {v(t[0])}, {v(t[0])}, {v(vh)}")
    a(f"v_lshlrev_b32 {v(t[0])}, 4, {v(t[0])}")
    a(f"v_lshl_add_u32 {v(vP)}, {v(vn5)}, 7, {v(t[0])}")
    if OPT["cpf"]:
        a("s_getpc_b64 s[12:13]")
        a.label("L_pc")
        a(f"s_lshr_b32 {s(sT0)}, s2, 3")
        a(f"s_lshl2_add_u32 {s(sT0)}, {s(sT0)}, {s(sW)}")
        a(f"s_lshl_b32 {s(sT0)}, {s(sT0)}, 9")
        a(f"s_sub_u32 s12, s12, L_pc-{KNAME}")
        a(f"s_subb_u32 s13, s13, 0")
        a(f"v_lshl_add_u32 {v(t[6])}, {v(vL)}, 3, {s(sT0)}")
        a(f"v_min_u32 {v(t[6])}, L_end-{KNAME}-8, {v(t[6])}")
        a(f"global_load_dwordx2 v[254:255], {v(t[6])}, s[12:13]")
    a(f"v_mov_b32 {v(t[7])}, 0")
    a(f"v_mov_b32 v240, 0")
    a("s_waitcnt lgkmcnt(0)")
    a(f"s_and_b32 {s(sLo)}, {s(sW)}, 1")
    a(f"s_lshr_b32 {s(sHi)}, {s(sW)}, 1")
    sk = a.newlabel("nopub")
    a(f"s_or_b32 {s(sT0)}, s2, {s(sW)}")
    a(f"s_cmp_lg_u32 {s(sT0)}, 0")
    a(f"s_cbranch_scc1 {sk}")
    a(f"s_or_b32 {s(sN+1)}, {s(sN+1)}, 0x80000000")
    a(f"v_mov_b32 {v(vN2)}, {s(sN)}")
    a(f"v_mov_b32 {v(vN2+1)}, {s(sN+1)}")
    a(f"global_store_dwordx2 {v(t[7])}, {v(vN2,2)}, {sp(P_DBG)} sc1")
    a.label(sk)
    make_srd(a, SRD_WS, P_WS, WS_SIZE)
    make_srd(a, SRD_X, P_X, 2048 * 1024)
    make_srd(a, SRD_O, P_OUT, 2048 * 2048)
    if OPT["tlb"]:
        sk = a.newlabel("notlb")
        a(f"s_cmp_lg_u32 {s(sW)}, 1")
        a(f"s_cbranch_scc1 {sk}")
        a(f"v_lshlrev_b32 {v(t[0])}, 21, {v(vL)}")
        a(f"buffer_load_dword v250, {v(t[0])}, {srd(SRD_WS)}, 0 offen")
        a(f"buffer_load_dword v251, {v(t[0])}, {srd(SRD_O)}, 0 offen")
        a(f"v_and_b32 {v(t[0])}, 0x600000, {v(t[0])}")
        a(f"global_load_dword v252, {v(t[0])}, {sp(P_WSP)}")
        for p_ in (P_CRE, P_CIM, P_WOUT, P_BSP, P_DSK, P_GW):
            a(f"global_load_dword v253, {v(t[7])}, {sp(p_)}")
        a.label(sk)
    a(f"s_lshl1_add_u32 {s(sT0)}, {s(sRB)}, {s(sTH3)}")
    a(f"s_lshl1_add_u32 {s(sT0)}, {s(sT0)}, {s(sHi)}")
    a(f"s_lshl_b32 {s(sT0)}, {s(sT0)}, 16")
    a(f"s_lshl1_add_u32 {s(sT1)}, {s(sDT)}, {s(sLo)}")
    a(f"s_lshl_b32 {s(sT1)}, {s(sT1)}, 7")
    a(f"s_mov_b64 s[82:83], {sp(P_WOUT)}")
    a(f"s_add_u32 s43, {s(sT0)}, {s(sT1)}")
    a(f"v_lshl_add_u32 {v(vO)}, {v(vh)}, 4, s43")
    a(f"v_lshl_add_u32 {v(vO)}, {v(vn5)}, 11, {v(vO)}")
    mark0 = va.mark()

    def nonce_issue():
        a(f"v_mov_b32 {v(t[7])}, 0")
        a(f"global_load_dwordx2 {v(vN2,2)}, {v(t[7])}, {sp(P_DBG)} sc1")

    def nonce_finish():
        L, D = a.newlabel("nonce"), a.newlabel("nonce_ok")
        a(f"s_mov_b32 {s(sCnt)}, {hx(OPT['spin'])}")
        a.label(L)
        a("s_waitcnt vmcnt(0)")
        a(f"v_readfirstlane_b32 {s(sN)}, {v(vN2)}")
        a(f"v_readfirstlane_b32 {s(sN+1)}, {v(vN2+1)}")
        a(f"s_cmp_lg_u32 {s(sN+1)}, 0")
        a(f"s_cbranch_scc1 {D}")
        a(f"s_sub_u32 {s(sCnt)}, {s(sCnt)}, 1")
        a(f"s_cbranch_scc1 {D}")
        a("s_sleep 1")
        nonce_issue()
        a(f"s_branch {L}")
        a.label(D)

    def pat4(base_s, maxc, minc=0):
        out = []
        for ss in range(4):
            x = va()
            a(f"v_xor_b32 {v(t[0])}, {32*ss}, {v(vP)}")
            a(f"v_add_u32 {v(x)}, {base_s}, {v(t[0])}")
            out.append(LdsAddr(a, va, x, maxc, minc))
        return out

    a(f"s_cmp_eq_u32 {s(sIsZ)}, 1")
    a("s_cbranch_scc1 L_zcons")
    vCh, vq = va(), va()
    a(f"v_and_b32 {v(t[1])}, 15, {v(vL)}")
    a(f"v_lshrrev_b32 {v(vq)}, 4, {v(vL)}")
    a(f"s_lshl_b32 {s(sT1)}, {s(sW)}, 4")
    a(f"v_add_u32 {v(vCh)}, {s(sT1)}, {v(t[1])}")
    a(f"s_lshl_b32 {s(sT0)}, {s(sCol)}, 6")
    a(f"v_add_lshl_u32 {v(t[0])}, {v(vCh)}, {s(sT0)}, 1")
    vLre, vLim, vLdt = va(), va(), va()
    a(f"global_load_ushort {v(vLre)}, {v(t[0])}, {sp(P_LRE)}")
    a(f"global_load_ushort {v(vLim)}, {v(t[0])}, {sp(P_LIM)}")
    a(f"global_load_ushort {v(vLdt)}, {v(t[0])}, {sp(P_LDT)}")
    a(f"s_mov_b64 s[36:37], {sp(P_CRE)}")
    a(f"s_mov_b64 s[30:31], {sp(P_CIM)}")
    RA = pat4("0", 163839)
    a(f"v_bfe_u32 {v(t[1])}, {v(vL)}, 4, 1")
    a(f"v_mul_u32_u24 {v(t[1])}, {48*128}, {v(t[1])}")
    a(f"s_lshl_b32 {s(sT0)}, {s(sW)}, 11")
    a(f"v_add_u32 {v(t[1])}, {s(sT0)}, {v(t[1])}")
    RB = []
    for ss in range(4):
        x = va()
        a(f"v_add_u32 {v(x)}, {v(RA[ss].regs[0])}, {v(t[1])}")
        RB.append(LdsAddr(a, va, x, 163839))
    vla, vlb = va(), va()
    Lm, Cf, M16, M32, MS = [va(2) for _ in range(5)]
    W = [va(2) for _ in range(4)]
    a("s_waitcnt vmcnt(0)")
    a(f"v_lshlrev_b32 {v(vLre)}, 16, {v(vLre)}")
    a(f"v_lshlrev_b32 {v(vLim)}, 16, {v(vLim)}")
    a(f"v_lshlrev_b32 {v(vLdt)}, 16, {v(vLdt)}")
    a(f"v_mul_f32 {v(t[0])}, {hx(f2u(LOG2E))}, {v(vLdt)}")
    a(f"v_exp_f32 {v(t[0])}, {v(t[0])}")
    a("s_nop 0")
    a(f"v_cvt_pk_bf16_f32 {v(t[0])}, {v(t[0])}, {v(t[0])}")
    a(f"v_lshlrev_b32 {v(t[0])}, 16, {v(t[0])}")
    a(f"v_mul_f32 {v(vla)}, {v(t[0])}, {v(vLre)}")
    a(f"v_mul_f32 {v(vlb)}, {v(t[0])}, {v(vLim)}")
    a(f"v_mul_f32 {v(vla)}, {hx(f2u(LOG2E))}, {v(vla)}")
    a(f"v_mul_f32 {v(vlb)}, {hx(f2u(1.0/(2*math.pi)))}, {v(vlb)}")
    a(f"v_mov_b32 {v(t[1])}, 1.0")
    cpow(a, Lm, t[1], vla, vlb, t[2])
    a(f"v_mul_f32 {v(t[2])}, {v(vLre)}, {v(vLre)}")
    a(f"v_fma_f32 {v(t[2])}, {v(vLim)}, {v(vLim)}, {v(t[2])}")
    a(f"v_rcp_f32 {v(t[2])}, {v(t[2])}")
    a(f"v_add_f32 {v(t[3])}, -1.0, {v(Lm)}")
    a(f"v_add_f32 {v(t[2])}, {v(t[2])}, {v(t[2])}")
    a(f"v_mul_f32 {v(Cf)}, {v(t[3])}, {v(vLre)}")
    a(f"v_fma_f32 {v(Cf)}, {v(Lm+1)}, {v(vLim)}, {v(Cf)}")
    a(f"v_mul_f32 {v(Cf+1)}, {v(Lm+1)}, {v(vLre)}")
    a(f"v_fma_f32 {v(Cf+1)}, -{v(t[3])}, {v(vLim)}, {v(Cf+1)}")
    a(f"v_mul_f32 {v(Cf)}, {v(Cf)}, {v(t[2])}")
    a(f"v_mul_f32 {v(Cf+1)}, {v(Cf+1)}, {v(t[2])}")
    a(f"v_mov_b32 {v(t[1])}, {hx(f2u(16.0))}")
    cpow(a, M16, t[1], vla, vlb, t[2])
    a(f"v_mov_b32 {v(t[1])}, {hx(f2u(32.0))}")
    cpow(a, M32, t[1], vla, vlb, t[2])
    a(f"v_lshlrev_b32 {v(t[1])}, 5, {v(vq)}")
    a(f"v_cvt_f32_u32 {v(t[1])}, {v(t[1])}")
    cpow(a, MS, t[1], vla, vlb, t[2])
    NM = [16, 18, 20, 22]
    for i in range(4):
        a(f"s_sub_i32 {s(sT0)}, {s(sRB)}, {1+4*i}")
        a(f"v_sub_u32 {v(t[3])}, {s(sT0)}, {v(vq)}")
        a(f"v_cmp_gt_i32 {sp(NM[i])}, 0, {v(t[3])}")
        a(f"v_max_i32 {v(t[1])}, 0, {v(t[3])}")
        a(f"v_lshlrev_b32 {v(t[1])}, 7, {v(t[1])}")
        a(f"v_cvt_f32_u32 {v(t[1])}, {v(t[1])}")
        cpow(a, W[i], t[1], vla, vlb, t[2])
    QM = [None, 24, 26, 28]
    for i in range(1, 4):
        a(f"v_cmp_eq_u32 {sp(QM[i])}, {i}, {v(vq)}")
    fx = [[[va(4, 4) for tt in range(4)] for s2 in range(2)] for b in range(2)]
    fb = [[va(4, 4) for s2 in range(2)] for b in range(2)]
    acc = [va(16, 4) for tt in range(4)]
    if OPT["l3"]:
        assert va.next <= 224
        a(f"s_lshl2_add_u32 {s(sT0)}, s2, {s(sW)}")
        a(f"v_lshlrev_b32 {v(t[0])}, 4, {v(vL)}")
        if 'c' in OPT["l3"]:
            a(f"s_lshl_b32 {s(sT1)}, {s(sT0)}, 10")
            a(f"v_add_u32 {v(t[1])}, {s(sT1)}, {v(t[0])}")
            a(f"global_load_dwordx4 v[224:227], {v(t[1])}, s[36:37]")
            a(f"global_load_dwordx4 v[228:231], {v(t[1])}, s[30:31]")
        if 'w' in OPT["l3"]:
            a(f"s_lshl_b32 {s(sT1)}, {s(sT0)}, 14")
            a(f"v_add_u32 {v(t[1])}, {s(sT1)}, {v(t[0])}")
            for e in range(16):
                a(f"global_load_dwordx4 {v(224+4*(e%8),4)}, {v(t[1])}, {sp(P_WSP)} offset:{(e%4)*1024}{OPT['ntt']}")
                if e % 4 == 3:
                    a(f"v_add_u32 {v(t[1])}, 4096, {v(t[1])}")
        if 'o' in OPT["l3"]:
            a(f"s_mul_i32 {s(sT1)}, {s(sT0)}, 1376")
            a(f"v_add_u32 {v(t[1])}, {s(sT1)}, {v(t[0])}")
            a(f"global_load_dwordx4 v[224:227], {v(t[1])}, s[82:83]")
            a(f"global_load_dwordx4 v[228:231], {v(t[1])}, s[82:83] offset:352")

    def u_reads(k, h):
        sl = p1slot(False, k)
        out = []
        for s2 in range(2):
            ss = 2 * h + s2
            out.append(f"ds_read_b128 {v(fb[h][s2],4)}, {RB[ss].at(sl+16384)}")
            for tt in range(4):
                out.append(f"ds_read_b128 {v(fx[h][s2][tt],4)}, {RA[ss].at(sl+tt*4096)}")
        return out

    def u_mfmas(k, h):
        return [f"{MF} {v(acc[tt],16)}, {v(fx[h][s2][tt],4)}, {v(fb[h][s2],4)}, {'0' if (k,h,s2)==(0,0,0) else v(acc[tt],16)}"
                for s2 in range(2) for tt in range(4)]
    uloop(a, 8, 2, u_reads, u_mfmas, 2,
          hooks={'start': lambda: stamp(a, 1), (4, 1): nonce_issue})
    stamp(a, 2)
    zero_ctr(a, t[0], t[1], U_CTR)
    fr = fx[0][0][0]
    nonce_finish()
    a("s_nop 3")
    for m in range(2):
        for i in range(16):
            a(f"v_permlane16_swap_b32 {v(acc[2*m]+i)}, {v(acc[2*m+1]+i)}")
    Pre = [acc[2 * (i >> 3)] + 2 * (i & 7) for i in range(16)]
    Pim = [acc[2 * (i >> 3) + 1] + 2 * (i & 7) for i in range(16)]
    cur = (Pre[0], Pim[0])
    for i in range(1, 16):
        nx = (fr + 4 * (i & 1), fr + 4 * (i & 1) + 2)
        pk_cfma(a, nx[0], nx[1], Lm, cur[0], cur[1], Pre[i], Pim[i])
        cur = nx
    E0, E1 = fr + 8, fr + 10
    a(f"v_mov_b32 {v(E0)}, {v(cur[0])}")
    a(f"v_mov_b32 {v(E0+1)}, {v(cur[1])}")
    a(f"v_mov_b32 {v(E1)}, {v(cur[0]+1)}")
    a(f"v_mov_b32 {v(E1+1)}, {v(cur[1]+1)}")
    cfma(a, E1, M16, E0, E1)
    X = [fr + 16, fr + 18, fr + 20, fr + 22]
    for c in range(2):
        a(f"v_mov_b32 {v(X[0]+c)}, {v(E1+c)}")
        a(f"v_mov_b32 {v(X[2]+c)}, {v(E1+c)}")
    a("s_nop 0")
    for c in range(2):
        a(f"v_permlane32_swap_b32 {v(X[0]+c)}, {v(X[2]+c)}")
    for c in range(2):
        a(f"v_mov_b32 {v(X[1]+c)}, {v(X[0]+c)}")
        a(f"v_mov_b32 {v(X[3]+c)}, {v(X[2]+c)}")
    a("s_nop 0")
    for c in range(2):
        a(f"v_permlane16_swap_b32 {v(X[0]+c)}, {v(X[1]+c)}")
        a(f"v_permlane16_swap_b32 {v(X[2]+c)}, {v(X[3]+c)}")
    cfma(a, X[1], M32, X[0], X[1])
    cfma(a, X[2], M32, X[1], X[2])
    G4 = fr + 24
    cfma(a, G4, M32, X[2], X[3])
    a(f"v_mov_b32 {v(G4+2)}, {s(sN)}")
    a(f"v_mov_b32 {v(G4+3)}, {s(sN+1)}")
    vSc = t[4]
    a(f"s_lshl_b32 {s(sT0)}, {s(sCol)}, 14")
    a(f"s_add_u32 {s(sT0)}, {s(sT0)}, {hx(SC_OFF)}")
    a(f"v_lshl_add_u32 {v(vSc)}, {v(vCh)}, 4, {s(sT0)}")
    a(f"s_lshl_b32 {s(sT0)}, {s(sRB)}, 10")
    a("s_mov_b64 exec, 0xffff")
    a(f"buffer_store_dwordx4 {v(G4,4)}, {v(vSc)}, {srd(SRD_WS)}, {s(sT0)} offen sc1")
    a("s_mov_b64 exec, -1")
    stamp(a, "a")
    vPo = t[5]
    a(f"v_lshl_add_u32 {v(vPo)}, {v(vq)}, 10, {v(vSc)}")
    GP = [fb[0][0], fb[0][1], fb[1][0], fb[1][1]]
    a(f"s_mov_b32 s30, 4096")
    a(f"s_mov_b32 s31, 8192")
    a(f"s_mov_b32 {s(sT0)}, 12288")
    loads = [f"buffer_load_dwordx4 {v(GP[i],4)}, {v(vPo)}, {srd(SRD_WS)}, {so} offen sc1" for i, so in enumerate(("0", "s30", "s31", s(sT0)))]
    PRE = fr + 14
    a(f"v_cndmask_b32 {v(PRE)}, 0, {v(X[0])}, {sp(QM[1])}")
    a(f"v_cndmask_b32 {v(PRE+1)}, 0, {v(X[0]+1)}, {sp(QM[1])}")
    for i in (2, 3):
        a(f"v_cndmask_b32 {v(PRE)}, {v(PRE)}, {v(X[i-1])}, {sp(QM[i])}")
        a(f"v_cndmask_b32 {v(PRE+1)}, {v(PRE+1)}, {v(X[i-1]+1)}, {sp(QM[i])}")
    UR = [fr + 32 + 2 * i for i in range(16)]
    for i in range(16):
        tm = t[2 * (i & 1)]
        a(f"v_pk_mul_f32 {v(UR[i],2)}, {v(Cf,2)}, {v(Pre[i],2)} op_sel:[0,0] op_sel_hi:[0,1]")
        a(f"v_pk_mul_f32 {v(tm,2)}, {v(Cf,2)}, {v(Pim[i],2)} op_sel:[0,0] op_sel_hi:[0,1]")
        a(f"v_pk_fma_f32 {v(UR[i],2)}, {v(Cf,2)}, {v(Pim[i],2)}, {v(UR[i],2)} op_sel:[1,0,0] op_sel_hi:[1,1,1] neg_lo:[1,0,0] neg_hi:[1,0,0]")
        a(f"v_pk_fma_f32 {v(Pim[i],2)}, {v(Cf,2)}, {v(Pre[i],2)}, {v(tm,2)} op_sel:[1,0,0] op_sel_hi:[1,1,1]")
    stamp(a, "b")
    poll(a, loads, [(GP[i] + 2, GP[i] + 3, i) for i in range(4)], NM, sleep=2)
    stamp(a, "c")
    for i in range(4):
        a(f"v_cndmask_b32 {v(GP[i])}, {v(GP[i])}, 0, {sp(NM[i])}")
        a(f"v_cndmask_b32 {v(GP[i]+1)}, {v(GP[i]+1)}, 0, {sp(NM[i])}")
    cmul(a, t[0], W[0], GP[0])
    for i in range(1, 4):
        cfma(a, t[0], W[i], GP[i], t[0])
    for sw in ("v_permlane16_swap_b32", "v_permlane32_swap_b32"):
        a(f"v_mov_b32 {v(t[2])}, {v(t[0])}")
        a(f"v_mov_b32 {v(t[3])}, {v(t[1])}")
        a("s_nop 1")
        a(f"{sw} {v(t[0])}, {v(t[2])}")
        a(f"{sw} {v(t[1])}, {v(t[3])}")
        a(f"v_add_f32 {v(t[0])}, {v(t[0])}, {v(t[2])}")
        a(f"v_add_f32 {v(t[1])}, {v(t[1])}, {v(t[3])}")
    cfma(a, PRE, MS, t[0], PRE)
    cfma(a, E0, M16, PRE, E0)
    cmul(a, t[0], Cf, PRE)
    cmul(a, t[2], Cf, E0)
    IR, II = X[0], X[1]
    a(f"v_mov_b32 {v(IR)}, {v(t[0])}")
    a(f"v_mov_b32 {v(IR+1)}, {v(t[2])}")
    a(f"v_mov_b32 {v(II)}, {v(t[1])}")
    a(f"v_mov_b32 {v(II+1)}, {v(t[3])}")
    cur = (IR, II)
    for i in range(16):
        pk_cfma(a, UR[i], Pim[i], Lm, cur[0], cur[1], UR[i], Pim[i])
        cur = (UR[i], Pim[i])
    a(f"v_lshlrev_b32 {v(t[0])}, 4, {v(vL)}")
    for m in range(1, 4):
        a(f"v_xor_b32 {v(t[m])}, {64*m}, {v(t[0])}")
    a(f"s_lshl_b32 {s(sT0)}, {s(sRB)}, 18")
    a(f"s_lshl_b32 {s(sT1)}, {s(sCol)}, 14")
    a(f"s_add_u32 {s(sT0)}, {s(sT0)}, {s(sT1)}")
    a(f"s_lshl_b32 {s(sT1)}, {s(sW)}, 12")
    a(f"s_add_u32 {s(sT0)}, {s(sT0)}, {s(sT1)}")
    a(f"s_add_u32 {s(sT0)}, {s(sT0)}, {hx(H_OFF)}")
    a(f"s_add_u32 {s(sT1)}, {s(sT0)}, {8*16384}")
    for part, src, neg in ((0, UR, ""), (1, Pim, "-")):
        for sub in range(2):
            for hf in range(2):
                o = acc[2 * part] + 8 * sub + 4 * hf
                for m in range(4):
                    i = 8 * hf + 2 * m
                    a(f"v_cvt_pk_bf16_f32 {v(o+m)}, {neg}{v(src[i]+sub)}, {neg}{v(src[i+1]+sub)}")
                m = 2 * sub + hf
                a(f"buffer_store_dwordx4 {v(o,4)}, {v(t[m])}, {srd(SRD_WS)}, {s(sT1 if part else sT0)} offen offset:{m*1024} sc1")
    a(f"s_lshl3_add_u32 {s(sT0)}, {s(sRB)}, {s(sCol)}")
    a(f"s_lshl_b32 {s(sT0)}, {s(sT0)}, 7")
    a(f"s_add_u32 {s(sT0)}, {s(sT0)}, {hx(FH_OFF)}")
    stamp(a, "i")
    a("s_waitcnt lgkmcnt(0)")
    a("s_barrier")
    store_flag(a, t[4], sT0, U_CTR)
    stamp(a, "d")
    a("s_branch L_p2cons")

    va.release(mark0)
    a.label("L_zcons")
    a(f"s_lshl_b32 {s(sT0)}, {s(sW)}, 12")
    RX = pat4(s(sT0), P1_R * Z_STAGE - 1)
    x = va()
    a(f"v_bfe_u32 {v(t[0])}, {v(vL)}, 2, 2")
    a(f"v_lshl_add_u32 {v(t[0])}, {v(vh)}, 3, {v(t[0])}")
    a(f"v_mul_u32_u24 {v(t[0])}, 192, {v(t[0])}")
    a(f"v_bfe_u32 {v(t[1])}, {v(vL)}, 4, 1")
    a(f"v_lshl_add_u32 {v(t[0])}, {v(t[1])}, 5, {v(t[0])}")
    a(f"v_and_b32 {v(t[1])}, 1, {v(vL)}")
    a(f"v_lshl_add_u32 {v(t[0])}, {v(t[1])}, 4, {v(t[0])}")
    a(f"v_bfe_u32 {v(t[1])}, {v(vL)}, 1, 1")
    a(f"v_lshl_add_u32 {v(x)}, {v(t[1])}, 3, {v(t[0])}")
    RW = LdsAddr(a, va, x, P1_R * Z_STAGE - 1)
    K, ONE = va(2), va(2)
    gelu_consts(a, K, ONE)
    a(f"s_cmp_lt_u32 {s(sCol)}, 3")
    a(f"s_cselect_b32 s16, 1.0, 0")
    a(f"s_cselect_b32 s17, 1.0, 0")
    a(f"s_cselect_b32 s18, 1, 0")
    a(f"s_cmp_eq_u32 {s(sCol)}, 7")
    a(f"s_cselect_b32 s18, 1, s18")
    fx = [[va(4, 4) for s2 in range(2)] for b in range(2)]
    fw = [[[va(4, 4) for p in range(3)] for s2 in range(2)] for b in range(2)]
    acc2 = [va(16, 4) for p in range(3)]
    acc1 = [192 + 16 * p for p in range(3)]
    GP = [va(4, 4) for _ in range(4)]
    ST = va(4, 4)
    vLn, vZ, vZx = va(), va(), va()
    a(f"v_lshl_add_u32 {v(t[0])}, {v(vn5)}, 1, {v(vh)}")
    a(f"v_lshlrev_b32 {v(vZ)}, 4, {v(t[0])}")
    sU = 19
    s_unit0(a, sU, sCol, sT0)
    a(f"s_lshl2_add_u32 {s(sT0)}, {s(sRB)}, {s(sW)}")
    a(f"s_mul_i32 {s(sT0)}, {s(sT0)}, 44")
    a(f"s_add_u32 {s(sT0)}, {s(sT0)}, {s(sU)}")
    a(f"s_lshl_b32 s22, {s(sT0)}, 10")
    a(f"s_add_u32 s23, s22, 4096")
    a(f"s_lshl1_add_u32 {s(sT0)}, {s(sRB)}, {s(sHi)}")
    a(f"s_lshl3_add_u32 {s(sT0)}, {s(sT0)}, {s(sLo)}")
    a(f"s_lshl_b32 {s(sT0)}, {s(sT0)}, 10")
    a(f"s_add_u32 {s(sT1)}, {s(sT0)}, {hx(Z2N_OFF)}")
    for e in range(6):
        a(f"s_add_u32 {s(sT0)}, {s(sU)}, {e}")
        a(f"s_lshr_b32 s{24+e}, {s(sT0)}, 2")
        a(f"s_lshl_b32 s{24+e}, s{24+e}, 18")
        a(f"s_add_u32 s{24+e}, s{24+e}, {s(sT1)}")
        a(f"s_and_b32 {s(sT0)}, {s(sT0)}, 3")
        a(f"s_lshl_b32 {s(sT0)}, {s(sT0)}, 11")
        a(f"s_add_u32 s{24+e}, s{24+e}, {s(sT0)}")
    vZe = va()
    a(f"s_and_b32 {s(sT0)}, {s(sU)}, 1")
    a(f"s_lshl_b32 {s(sT0)}, {s(sT0)}, 7")
    a(f"v_xor_b32 {v(vZe)}, {s(sT0)}, {v(vZ)}")
    a(f"v_xor_b32 {v(vZx)}, 128, {v(vZe)}")
    a(f"s_lshl_b32 {s(sT0)}, {s(sRB)}, 14")
    a(f"s_lshl_b32 {s(sT1)}, {s(sW)}, 9")
    a(f"s_add_u32 {s(sT0)}, {s(sT0)}, {s(sT1)}")
    a(f"s_add_u32 {s(sT0)}, {s(sT0)}, {hx(LN_OFF)}")
    a(f"v_lshl_add_u32 {v(vLn)}, {v(vn5)}, 4, {s(sT0)}")
    vLp = va()
    a(f"v_lshl_add_u32 {v(vLp)}, {v(vh)}, 13, {v(vLn)}")
    a(f"s_movk_i32 s20, 0x1000")
    a(f"s_lshl_b32 s21, {s(sCol)}, 11")
    a(f"v_mov_b32 {v(t[0])}, {hx(Z_CTR)}")
    a(f"v_mov_b32 {v(t[2])}, 0")
    a(f"v_mov_b32 {v(t[3])}, 0")
    a(f"ds_write_b64 {v(t[0])}, {v(t[2],2)}")

    def z_reads(k, h):
        sl = (k % P1_R) * Z_STAGE
        out = []
        for s2 in range(2):
            ss = 2 * h + s2
            out.append(f"ds_read_b128 {v(fx[h][s2],4)}, {RX[ss].at(sl)}")
            for p in range(3):
                b = sl + 16384 + ss * 3072 + p * 64
                out.append(f"ds_read_b64_tr_b16 {v(fw[h][s2][p],2)}, {RW.at(b)}")
                out.append(f"ds_read_b64_tr_b16 {v(fw[h][s2][p]+2,2)}, {RW.at(b+768)}")
        return out

    def z_mfmas(k, h):
        acc = acc2 if k < 8 else acc1
        return [f"{MF} {v(acc[p],16)}, {v(fw[h][s2][p],4)}, {v(fx[h][s2],4)}, {'0' if (k%8,h,s2)==(0,0,0) else v(acc[p],16)}"
                for s2 in range(2) for p in range(3)]

    pairs2 = [acc2[p] + 2 * i for p in range(3) for i in range(8)]

    def after_pass1():
        stamp(a, 2)
        nonce_finish()
        a("s_nop 3")
        for ins in gelu_pk(pairs2, [GP[0], GP[0] + 2, GP[1], GP[1] + 2], K, ONE):
            a(ins)
        for x_ in pairs2[20:]:
            a(f"v_pk_mul_f32 {v(x_,2)}, {v(x_,2)}, s[16:17]")
        S, Q = [GP[0], GP[0] + 2], [GP[1], GP[1] + 2]
        for j, x_ in enumerate(pairs2):
            c = j & 1
            if j < 2:
                a(f"v_pk_mul_f32 {v(Q[c],2)}, {v(x_,2)}, {v(x_,2)}")
            else:
                a(f"v_pk_fma_f32 {v(Q[c],2)}, {v(x_,2)}, {v(x_,2)}, {v(Q[c],2)}")
                a(f"v_pk_add_f32 {v(S[c],2)}, {v(pairs2[c] if j < 4 else S[c],2)}, {v(x_,2)}")
        a(f"v_pk_add_f32 {v(S[0],2)}, {v(S[0],2)}, {v(S[1],2)}")
        a(f"v_pk_add_f32 {v(Q[0],2)}, {v(Q[0],2)}, {v(Q[1],2)}")
        a(f"v_add_f32 {v(ST)}, {v(S[0])}, {v(S[0]+1)}")
        a(f"v_add_f32 {v(ST+1)}, {v(Q[0])}, {v(Q[0]+1)}")
        a(f"v_mov_b64 {v(ST+2,2)}, {v(ST,2)}")
        a("s_nop 1")
        a(f"v_permlane32_swap_b32 {v(ST)}, {v(ST+2)}")
        a(f"v_permlane32_swap_b32 {v(ST+1)}, {v(ST+3)}")
        a(f"v_pk_add_f32 {v(ST,2)}, {v(ST,2)}, {v(ST+2,2)}")
        a(f"v_mov_b32 {v(ST+2)}, {s(sN)}")
        a(f"v_mov_b32 {v(ST+3)}, {s(sN+1)}")
        a("s_mov_b64 exec, 0xffffffff")
        a(f"buffer_store_dwordx4 {v(ST,4)}, {v(vLn)}, {srd(SRD_WS)}, s21 offen sc1")
        a("s_mov_b64 exec, -1")
        stamp(a, "a")

    lnloads = [f"buffer_load_dwordx4 {v(GP[i],4)}, {v(vLp)}, {srd(SRD_WS)}, {'0' if i < 2 else 's20'} offen offset:{(i&1)*2048} sc1" for i in range(4)]

    def ln_check():
        poll(a, lnloads, [(GP[i] + 2, GP[i] + 3, i) for i in range(4)], [None] * 4, first_issued=True)
        stamp(a, "c")

    g = GP[0]
    fin = [f"v_pk_add_f32 {v(GP[0],2)}, {v(GP[0],2)}, {v(GP[1],2)}", f"v_pk_add_f32 {v(GP[2],2)}, {v(GP[2],2)}, {v(GP[3],2)}",
           f"v_pk_add_f32 {v(g,2)}, {v(g,2)}, {v(GP[2],2)}", f"v_mov_b64 {v(g+2,2)}, {v(g,2)}",
           ["s_nop 1", f"v_permlane32_swap_b32 {v(g)}, {v(g+2)}", f"v_permlane32_swap_b32 {v(g+1)}, {v(g+3)}"],
           f"v_pk_add_f32 {v(g,2)}, {v(g,2)}, {v(g+2,2)}",
           f"v_mul_f32 {v(g)}, {hx(f2u(1.0/688))}, {v(g)}", f"v_mul_f32 {v(g+1)}, {hx(f2u(1.0/688))}, {v(g+1)}",
           f"v_fma_f32 {v(g+1)}, -{v(g)}, {v(g)}, {v(g+1)}", f"v_max_f32 {v(g+1)}, 0, {v(g+1)}",
           f"v_add_f32 {v(g+1)}, {hx(f2u(1e-5))}, {v(g+1)}", f"v_rsq_f32 {v(ST)}, {v(g+1)}",
           ["s_nop 0", f"v_mul_f32 {v(ST+1)}, -{v(g)}, {v(ST)}"]]

    def pack(acc, e):
        r = acc[e >> 1] + 8 * (e & 1)
        return [f"v_cvt_pk_bf16_f32 {v(r+i)}, {v(r+2*i)}, {v(r+2*i+1)}" for i in range(4)], r

    for e in range(6):
        r = acc2[e >> 1] + 8 * (e & 1)
        fin += [f"v_pk_fma_f32 {v(r+2*i,2)}, {v(r+2*i,2)}, {v(ST,2)}, {v(ST,2)} op_sel:[0,0,1] op_sel_hi:[1,0,1]" for i in range(4)]
        fin += pack(acc2, e)[0]
        st_ = f"buffer_store_dwordx4 {v(r,4)}, {v(vZx if e & 1 else vZe)}, {srd(SRD_WS)}, s{24+e} offen sc1"
        if e < 5:
            fin.append(st_)
        else:
            lab = a.newlabel("z2skip")
            fin.append(["s_cmp_eq_u32 s18, 0", f"s_cbranch_scc1 {lab}", st_, lab + ":"])
    k0 = OPT["early"]
    hooks = {'start': lambda: stamp(a, 1), (4, 1): nonce_issue, ('post', 7, 1): after_pass1,
             (k0 - 2, 0): lambda: [a(l) for l in lnloads]}
    fill = {}
    if k0 < 16:
        hooks[(k0, 0)] = ln_check
        fill = spread(fin, [(k, h) for k in range(k0, 16) for h in range(2)])
    uloop(a, 16, 2, z_reads, z_mfmas, OPT["rz"], hooks=hooks, fillers=fill, fpm=OPT["fz"])
    stamp(a, "b")
    if k0 >= 16:
        ln_check()
        for it in fin:
            for x_ in (it if isinstance(it, list) else [it]):
                a(x_)
    a(f"s_lshl3_add_u32 {s(sT0)}, {s(sRB)}, {s(sCol)}")
    a(f"s_lshl_b32 {s(sT0)}, {s(sT0)}, 7")
    a(f"s_add_u32 {s(sT0)}, {s(sT0)}, {hx(FZ_OFF)}")
    assert va.next <= 192
    stamp(a, "i")
    a("s_barrier")
    store_flag(a, t[4], sT0, Z_CTR)
    stamp(a, "d")
    a(f"v_mov_b32 v240, {v(vZ)}")
    a(f"s_mov_b32 s36, s22")
    a(f"s_mov_b32 s37, s23")
    a(f"s_mov_b32 s38, s18")
    a(f"s_lshl3_add_u32 {s(sT0)}, {s(sRB)}, {s(sCol)}")
    a(f"s_lshl2_add_u32 {s(sT0)}, {s(sT0)}, {s(sW)}")
    a(f"s_lshl_b32 {s(sT0)}, {s(sT0)}, 7")
    a(f"s_add_u32 s39, {s(sT0)}, {hx(F1_OFF)}")

    def z1_stores():
        lab0 = a.newlabel("noz1")
        a(f"s_cmp_eq_u32 {s(sIsZ)}, 0")
        a(f"s_cbranch_scc1 {lab0}")
        for e in range(6):
            ins, r = pack(acc1, e)
            if e == 5:
                a("s_cmp_eq_u32 s38, 0")
                a(f"s_cbranch_scc1 {lab0}")
            for x_ in ins:
                a(x_)
            a(f"buffer_store_dwordx4 {v(r,4)}, v240, {srd(SRD_WS)}, {'s36' if e < 4 else 's37'} offen offset:{(e&3)*1024} sc1")
        a.label(lab0)

    def z1_flag():
        lab0 = a.newlabel("noz1f")
        a(f"s_cmp_eq_u32 {s(sIsZ)}, 0")
        a(f"s_cbranch_scc1 {lab0}")
        store_flag(a, t[0], 39)
        a.label(lab0)

    va.release(mark0)
    a.label("L_p2cons")
    stamp(a, 3)
    sF2 = 30
    a(f"s_lshl4_add_u32 {s(sT0)}, {s(sRB)}, {s(sRole)}")
    a(f"s_lshl2_add_u32 {s(sT0)}, {s(sT0)}, {s(sW)}")
    a(f"s_lshl_b32 {s(sT0)}, {s(sT0)}, 7")
    a(f"s_add_u32 {s(sF2)}, {s(sT0)}, {hx(F2_OFF)}")
    mark2 = va.mark()
    a(f"s_cmp_eq_u32 {s(sRole)}, 15")
    a("s_cbranch_scc1 L_gate")
    a(f"s_cmp_ge_u32 {s(sRole)}, 11")
    a("s_cbranch_scc1 L_ycons")
    for b, dst in ((0, sT0), (1, sT1)):
        a(f"s_lshl_b32 {s(sT2)}, {s(sRole)}, 2")
        if b:
            a(f"s_add_u32 {s(sT2)}, {s(sT2)}, 3")
            a(f"s_min_u32 {s(sT2)}, {s(sT2)}, 42")
        a(f"s_mul_i32 {s(dst)}, {s(sT2)}, 43")
        a(f"s_sub_u32 {s(sT3)}, {s(sT2)}, 3")
        a(f"s_mul_i32 {s(sT3)}, {s(sT3)}, 52")
        a(f"s_cmp_lt_u32 {s(sT2)}, 18")
        a(f"s_cselect_b32 {s(dst)}, {s(dst)}, {s(sT3)}")
        a(f"s_lshr_b32 {s(dst)}, {s(dst)}, 8")
    vF1, pl1 = va(), va(2)
    a(f"s_sub_u32 {s(sT1)}, {s(sT1)}, {s(sT0)}")
    a(f"v_and_b32 {v(t[0])}, 1, {v(vL)}")
    a(f"v_mul_u32_u24 {v(t[0])}, {s(sT1)}, {v(t[0])}")
    a(f"v_add_u32 {v(t[0])}, {s(sT0)}, {v(t[0])}")
    a(f"v_bfe_u32 {v(t[1])}, {v(vL)}, 1, 4")
    a(f"v_lshl_add_u32 {v(t[1])}, {v(t[1])}, 3, {v(t[0])}")
    a(f"s_mov_b32 {s(sT0)}, {hx(FZ_OFF)}")
    a(f"v_lshl_add_u32 {v(t[6])}, {v(t[1])}, 7, {s(sT0)}")
    a(f"s_lshl_b32 {s(sT0)}, {s(sRB)}, 5")
    a(f"s_add_u32 {s(sT0)}, {s(sT0)}, {s(sW)}")
    a(f"s_lshl_b32 {s(sT0)}, {s(sT0)}, 7")
    a(f"s_add_u32 {s(sT0)}, {s(sT0)}, {hx(F1_OFF)}")
    a(f"v_lshl_add_u32 {v(vF1)}, {v(t[0])}, 9, {s(sT0)}")
    x0, x1 = va(), va()
    a(f"v_bfe_u32 {v(t[0])}, {v(vL)}, 4, 1")
    a(f"v_bfe_u32 {v(t[1])}, {v(vL)}, 2, 2")
    a(f"v_lshl_add_u32 {v(t[1])}, {v(t[0])}, 2, {v(t[1])}")
    a(f"v_lshl_add_u32 {v(t[1])}, {v(vh)}, 3, {v(t[1])}")
    a(f"v_lshlrev_b32 {v(t[1])}, 5, {v(t[1])}")
    a(f"v_lshl_add_u32 {v(t[1])}, {v(t[0])}, 11, {v(t[1])}")
    a(f"v_and_b32 {v(t[0])}, 1, {v(vL)}")
    a(f"v_lshl_add_u32 {v(t[1])}, {v(t[0])}, 4, {v(t[1])}")
    a(f"v_bfe_u32 {v(t[0])}, {v(vL)}, 1, 1")
    a(f"v_lshl_add_u32 {v(x0)}, {v(t[0])}, 3, {v(t[1])}")
    a(f"v_xor_b32 {v(x1)}, 128, {v(x0)}")
    pa = [LdsAddr(a, va, x_, 163839, GW_R * 16384) for x_ in (x0, x1)]
    a(f"s_lshl_b32 {s(sT1)}, {s(sW)}, 12")
    pb = pat4(s(sT1), GW_R * 16384 - 1)
    K, ONE = va(2), va(2)
    gelu_consts(a, K, ONE)
    gt = va(2)
    bs = va(2)
    vZ = va()
    z1 = va(16, 4)
    zg = va(32, 4)
    acc = [va(16, 4) for fu in range(2)]
    fB = [[va(4, 4) for ss in range(4)] for b in range(2)]
    res, lds = g_plan()
    rreg = [z1, zg, zg + 16] + [va(16, 4) for _ in range(max(0, len(res) - 3))]
    assert va.next <= 192
    fA = [[[192 + 32 * b + 8 * ss + 4 * fu for fu in range(2)] for ss in range(4)] for b in range(2)]
    a(f"s_lshl2_add_u32 {s(sT0)}, {s(sRB)}, {s(sW)}")
    a(f"s_lshl_b32 {s(sT1)}, {s(sT0)}, 6")
    a(f"v_lshl_add_u32 {v(t[7])}, {v(vn5)}, 1, {s(sT1)}")
    a(f"v_lshl_add_u32 {v(vZ)}, {v(vn5)}, 1, {v(vh)}")
    a(f"v_lshlrev_b32 {v(vZ)}, 4, {v(vZ)}")
    a(f"s_mul_i32 {s(sT0)}, {s(sT0)}, 44")
    a(f"s_lshl2_add_u32 {s(sT0)}, {s(sRole)}, {s(sT0)}")
    a(f"s_lshl_b32 s16, {s(sT0)}, 10")
    if res:
        a("s_barrier")
        for i in range(len(res)):
            for ss in range(4):
                a(f"ds_read_b128 {v(rreg[i]+4*ss,4)}, {pb[ss].at(i*16384)}")
        a("s_waitcnt lgkmcnt(0)")
        a("s_barrier")
    stamp(a, "j")
    sk = a.newlabel("nopoll")
    a(f"s_cmp_lg_u32 {s(sW)}, 0")
    a(f"s_cbranch_scc1 {sk}")
    flag_poll(a, t[6], t[2], "0xffffffff")
    a.label(sk)
    stamp(a, "k")
    a("s_barrier")
    z1_stores()

    def g_reads(k, h):
        b = k & 1
        zs = GW_R * 16384 + (k % GZ_R) * 8192
        out = []
        for ss in range(4):
            if k in lds:
                out.append(f"ds_read_b128 {v(fB[b][ss],4)}, {pb[ss].at((lds.index(k) % GW_R) * 16384)}")
            for fu in range(2):
                out.append(f"ds_read_b64_tr_b16 {v(fA[b][ss][fu],2)}, {pa[0].at(zs+fu*4096+ss*512)}")
                out.append(f"ds_read_b64_tr_b16 {v(fA[b][ss][fu]+2,2)}, {pa[1].at(zs+fu*4096+ss*512)}")
        return out

    def g_mfmas(k, h):
        if "nomfma" in OPT["x"]:
            return ["s_nop 0"] * 8
        b = k & 1
        wf = [fB[b][ss] if k in lds else rreg[res.index(k)] + 4 * ss for ss in range(4)]
        return [f"{MF} {v(acc[fu],16)}, {v(fA[b][ss][fu],4)}, {v(wf[ss],4)}, {'0' if (k,ss)==(0,0) else v(acc[fu],16)}"
                for ss in range(4) for fu in range(2)]

    def z1_flag_issue():
        a("s_mov_b64 exec, 3")
        a(f"buffer_load_dwordx2 {v(pl1,2)}, {v(vF1)}, {srd(SRD_WS)}, 0 offen sc1")
        a("s_mov_b64 exec, -1")
        a(f"global_load_ushort {v(bs)}, {v(t[7])}, {sp(P_BSP)}")

    def z1_loads():
        flag_poll(a, vF1, pl1, "3", issued=True)
        for c in range(4):
            a(f"buffer_load_dwordx4 {v(z1+4*c,4)}, {v(vZ)}, {srd(SRD_WS)}, s16 offen offset:{Z1_OFF + c*1024} sc1")
    fill = {}
    for d in range(16):
        dst = zg + 2 * d
        fl = [f"v_lshlrev_b32 {v(dst)}, 16, {v(z1+d)}", f"v_and_b32 {v(dst+1)}, 0xffff0000, {v(z1+d)}"]
        fl += gelu_pk([dst], [gt], K, ONE)
        if d == 0:
            fl = ["s_waitcnt vmcnt(0)", f"v_lshlrev_b32 {v(bs)}, 16, {v(bs)}", f"v_lshlrev_b32 {v(vZ)}, 4, {v(vL)}"] + fl
        fill[(14 + d, 0)] = fl
    uloop(a, 32, 1, g_reads, g_mfmas, OPT["rg"], hooks={'start': lambda: stamp(a, 4), (1, 0): z1_flag, (6, 0): z1_flag_issue, (10, 0): z1_loads}, fillers=fill)
    stamp(a, 5)
    a("s_nop 7")
    a("s_nop 3")
    for fu in range(2):
        for c in range(2):
            o = fB[0][2 * fu + c]
            for i in range(4):
                r = acc[fu] + 8 * c + 2 * i
                a(f"v_pk_add_f32 {v(r,2)}, {v(r,2)}, {v(bs,2)} op_sel_hi:[1,0]")
            for i in range(4):
                r = acc[fu] + 8 * c + 2 * i
                a(f"v_pk_mul_f32 {v(r,2)}, {v(r,2)}, {v(zg + 2*(8*fu+4*c+i),2)}")
            for i in range(4):
                r = acc[fu] + 8 * c + 2 * i
                a(f"v_cvt_pk_bf16_f32 {v(o+i)}, {v(r)}, {v(r+1)}")
            a(f"buffer_store_dwordx4 {v(o,4)}, {v(vZ)}, {srd(SRD_WS)}, s16 offen offset:{(2*fu+c)*1024} sc1")
    stamp(a, "e")
    a("s_barrier")
    store_flag(a, t[0], sF2)
    stamp(a, "f")
    a("s_branch L_p3cons")
    va.release(mark2)
    a.label("L_ycons")
    a(f"s_lshl_b32 {s(sT0)}, {s(sRB)}, 10")
    a(f"s_add_u32 {s(sT0)}, {s(sT0)}, {hx(FH_OFF)}")
    a(f"v_lshl_add_u32 {v(t[6])}, {v(vL)}, 7, {s(sT0)}")
    a(f"s_lshl_b32 {s(sT0)}, {s(sLo)}, 13")
    pa = pat4(s(sT0), YC_R * 16384 - 1)
    a(f"v_bfe_u32 {v(t[0])}, {v(vL)}, 4, 1")
    a(f"v_bfe_u32 {v(t[1])}, {v(vL)}, 1, 1")
    a(f"v_lshl_add_u32 {v(t[0])}, {v(t[0])}, 1, {v(t[1])}")
    a(f"v_bfe_u32 {v(t[1])}, {v(vL)}, 2, 2")
    a(f"v_lshl_add_u32 {v(t[1])}, {v(vh)}, 3, {v(t[1])}")
    a(f"v_lshlrev_b32 {v(t[2])}, 2, {v(t[0])}")
    a(f"v_xor_b32 {v(t[1])}, {v(t[1])}, {v(t[2])}")
    a(f"v_lshlrev_b32 {v(t[1])}, 4, {v(t[1])}")
    a(f"v_lshl_add_u32 {v(t[1])}, {v(t[0])}, 10, {v(t[1])}")
    a(f"v_and_b32 {v(t[0])}, 1, {v(vL)}")
    a(f"v_lshl_add_u32 {v(t[1])}, {v(t[0])}, 3, {v(t[1])}")
    a(f"s_lshl_b32 {s(sT0)}, {s(sHi)}, 9")
    y0, y1 = va(), va()
    a(f"v_add_u32 {v(y0)}, {s(sT0)}, {v(t[1])}")
    a(f"v_xor_b32 {v(y1)}, 64, {v(y0)}")
    pb = [LdsAddr(a, va, y_, 163839, YC_R * 16384) for y_ in (y0, y1)]
    fA = [[[va(4, 4) for dd in range(2)] for s2 in range(2)] for b in range(2)]
    fB = [[[va(4, 4) for tt in range(2)] for s2 in range(2)] for b in range(2)]
    acc = [[va(16, 4) for dd in range(2)] for tt in range(2)]
    a(f"s_lshl_b32 {s(sT0)}, {s(sHi)}, 13")
    a(f"s_mul_i32 {s(sT1)}, {s(sLo)}, {YC_R*16384 + (16 % YH_R)*16384}")
    a(f"s_add_u32 {s(sT0)}, {s(sT0)}, {s(sT1)}")
    px = []
    for ss in range(4):
        x_ = va()
        a(f"v_xor_b32 {v(t[0])}, {32*ss}, {v(vP)}")
        a(f"v_add_u32 {v(x_)}, {s(sT0)}, {v(t[0])}")
        px.append(x_)
    dg = [[va(4, 4) for s2 in range(2)] for dd in range(2)]
    a(f"s_sub_u32 {s(sT1)}, {s(sRole)}, 11")
    a(f"s_lshl1_add_u32 {s(sT1)}, {s(sT1)}, {s(sLo)}")
    a(f"s_lshl_b32 {s(sT1)}, {s(sT1)}, 7")
    a(f"v_lshl_add_u32 {v(t[0])}, {v(vn5)}, 1, {s(sT1)}")
    a(f"global_load_ushort {v(t[4])}, {v(t[0])}, {sp(P_DSK)}")
    a(f"global_load_ushort {v(t[5])}, {v(t[0])}, {sp(P_DSK)} offset:64")
    a(f"v_and_b32 {v(t[0])}, 1, {v(vn5)}")
    a(f"v_lshlrev_b32 {v(t[0])}, 4, {v(t[0])}")
    a(f"v_lshrrev_b32 {v(t[1])}, 1, {v(vn5)}")
    a(f"v_lshlrev_b32 {v(t[2])}, 2, {v(vh)}")
    a(f"v_sub_u32 {v(t[1])}, {v(t[1])}, {v(t[2])}")
    a("s_waitcnt vmcnt(0)")
    a(f"v_lshlrev_b32 {v(t[4])}, {v(t[0])}, {v(t[4])}")
    a(f"v_lshlrev_b32 {v(t[5])}, {v(t[0])}, {v(t[5])}")
    for s2 in range(2):
        for e in range(4):
            a(f"v_cmp_eq_u32 vcc, {8*s2+e}, {v(t[1])}")
            a("s_nop 1")
            for dd in range(2):
                a(f"v_cndmask_b32 {v(dg[dd][s2]+e)}, 0, {v(t[4+dd])}, vcc")
    vA = va()
    assert va.next <= 192
    a(f"v_lshrrev_b32 {v(t[4])}, 3, {v(vL)}")
    a(f"v_and_b32 {v(t[5])}, 7, {v(vL)}")
    a(f"v_lshlrev_b32 {v(t[5])}, 4, {v(t[5])}")
    a(f"v_lshl_add_u32 {v(vA)}, {v(t[4])}, 11, {v(t[5])}")
    a(f"s_lshl1_add_u32 {s(sT0)}, {s(sRB)}, {s(sHi)}")
    a(f"s_lshl_b32 {s(sT0)}, {s(sT0)}, 17")
    a(f"s_sub_u32 {s(sT1)}, {s(sRole)}, 11")
    a(f"s_lshl1_add_u32 {s(sT1)}, {s(sT1)}, {s(sLo)}")
    a(f"s_lshl_b32 {s(sT1)}, {s(sT1)}, 8")
    a(f"s_add_u32 s16, {s(sT0)}, {s(sT1)}")
    for i in range(1, 8):
        a(f"s_add_u32 s{16+i}, s16, {i*16384}")
    stamp(a, "j")
    sk = a.newlabel("nopoll")
    a(f"s_cmp_lg_u32 {s(sW)}, 0")
    a(f"s_cbranch_scc1 {sk}")
    flag_poll(a, t[6], t[2], "0xff")
    a.label(sk)
    stamp(a, "k")
    a("s_barrier")
    z1_stores()

    def y_reads(k, h):
        if k == 16:
            return [f"ds_read_b128 {v(fB[h][s2][tt],4)}, {v(px[2*h+s2])} offset:{tt*4096}" for s2 in range(2) for tt in range(2)]
        cs = (k % YC_R) * 16384
        hs = YC_R * 16384 + (k % YH_R) * 16384
        out = []
        for s2 in range(2):
            ss = 2 * h + s2
            for i in range(2):
                out.append(f"ds_read_b128 {v(fA[h][s2][i],4)}, {pa[ss].at(cs+i*4096)}")
                b = hs + ss * 4096 + i * 256
                out.append(f"ds_read_b64_tr_b16 {v(fB[h][s2][i],2)}, {pb[0].at(b)}")
                out.append(f"ds_read_b64_tr_b16 {v(fB[h][s2][i]+2,2)}, {pb[1].at(b)}")
        return out

    def y_mfmas(k, h):
        if k == 16:
            return [f"{MF} {v(acc[tt][h],16)}, {v(dg[h][s2],4)}, {v(fB[h][s2][tt],4)}, {v(acc[tt][h],16)}" for s2 in range(2) for tt in range(2)]
        return [f"{MF} {v(acc[tt][dd],16)}, {v(fA[h][s2][dd],4)}, {v(fB[h][s2][tt],4)}, {'0' if (k,h,s2)==(0,0,0) else v(acc[tt][dd],16)}"
                for s2 in range(2) for tt in range(2) for dd in range(2)]
    uloop(a, 17, 2, y_reads, y_mfmas, 2, hooks={'start': lambda: stamp(a, 4), (0, 1): z1_flag})
    stamp(a, 5)
    a("s_nop 7")
    a("s_nop 3")
    for tt in range(2):
        for dd in range(2):
            for j in range(4):
                a(f"buffer_store_dwordx4 {v(acc[tt][dd]+4*j,4)}, {v(vA)}, {srd(SRD_O)}, s{16+4*tt+j} offen offset:{dd*128} sc1")
    stamp(a, "e")
    a("s_barrier")
    store_flag(a, t[0], sF2)
    stamp(a, "f")
    a("s_branch L_p3cons")
    va.release(mark2)
    a.label("L_gate")
    a("s_barrier")
    z1_stores()
    z1_flag()
    xr = [va(4, 4) for _ in range(16)]
    gw = va(4, 4)
    gu = va(8)
    sm = [va() for _ in range(16)]
    res = va()
    a(f"s_lshl2_add_u32 s16, {s(sRB)}, {s(sW)}")
    a(f"s_lshl_b32 s16, s16, 5")
    a(f"s_lshl_b32 {s(sT1)}, s16, 10")
    a(f"v_lshlrev_b32 {v(t[0])}, 4, {v(vL)}")
    a(f"v_add_u32 {v(t[1])}, {s(sT1)}, {v(t[0])}")
    a(f"global_load_dwordx4 {v(gw,4)}, {v(t[0])}, {sp(P_GW)}")
    a(f"v_mov_b32 {v(res)}, 0")
    a("s_waitcnt vmcnt(0)")
    for i in range(4):
        a(f"v_lshlrev_b32 {v(gu+2*i)}, 16, {v(gw+i)}")
        a(f"v_and_b32 {v(gu+2*i+1)}, 0xffff0000, {v(gw+i)}")
    a(f"v_mov_b32 {v(t[4])}, {v(vL)}")
    a(f"s_mov_b32 s17, 0")
    a.label("L_gateround")
    for i in range(16):
        if i % 4 == 0:
            a(f"s_add_u32 {s(sT2)}, s17, {i*1024}")
        a(f"buffer_load_dwordx4 {v(xr[i],4)}, {v(t[1])}, {srd(SRD_X)}, {s(sT2)} offen offset:{(i%4)*1024}")
    for i in range(16):
        a(f"s_waitcnt vmcnt({15-i})")
        for e in range(4):
            a(f"v_lshlrev_b32 {v(t[2])}, 16, {v(xr[i]+e)}")
            a(f"v_and_b32 {v(t[3])}, 0xffff0000, {v(xr[i]+e)}")
            a(f"v_pk_mul_f32 {v(t[2],2)}, {v(t[2],2)}, {v(gu+2*e,2)}")
            a(f"v_cvt_pk_bf16_f32 {v(t[2])}, {v(t[2])}, {v(t[3])}")
            a(f"v_and_b32 {v(t[3])}, 0xffff0000, {v(t[2])}")
            a(f"v_lshlrev_b32 {v(t[2])}, 16, {v(t[2])}")
            if e == 0:
                a(f"v_add_f32 {v(sm[i])}, {v(t[2])}, {v(t[3])}")
            else:
                a(f"v_add_f32 {v(sm[i])}, {v(sm[i])}, {v(t[2])}")
                a(f"v_add_f32 {v(sm[i])}, {v(sm[i])}, {v(t[3])}")
    for sh in (8, 4, 2, 1):
        for i in range(16):
            a(f"v_add_f32_dpp {v(sm[i])}, {v(sm[i])}, {v(sm[i])} row_ror:{sh} row_mask:0xf bank_mask:0xf")
    for sw in ("v_permlane16_swap_b32", "v_permlane32_swap_b32"):
        for i in range(16):
            a(f"v_mov_b32 {v(xr[0]+i)}, {v(sm[i])}")
        a("s_nop 0")
        for i in range(16):
            a(f"{sw} {v(sm[i])}, {v(xr[0]+i)}")
        for i in range(16):
            a(f"v_add_f32 {v(sm[i])}, {v(sm[i])}, {v(xr[0]+i)}")
    for i in range(16):
        a(f"v_cmp_eq_u32 vcc, {i}, {v(t[4])}")
        a("s_nop 1")
        a(f"v_cndmask_b32 {v(res)}, {v(res)}, {v(sm[i])}, vcc")
    a(f"v_subrev_u32 {v(t[4])}, 16, {v(t[4])}")
    a(f"s_add_u32 s17, s17, 16384")
    a(f"s_cmp_lt_u32 s17, 32768")
    a("s_cbranch_scc1 L_gateround")
    g2 = gw
    a(f"v_cvt_pk_bf16_f32 {v(t[2])}, {v(res)}, {v(res)}")
    a(f"v_lshlrev_b32 {v(t[2])}, 16, {v(t[2])}")
    a(f"v_mul_f32 {v(t[2])}, {hx(f2u(-LOG2E))}, {v(t[2])}")
    a(f"v_exp_f32 {v(t[2])}, {v(t[2])}")
    a("s_nop 0")
    a(f"v_add_f32 {v(t[2])}, 1.0, {v(t[2])}")
    a(f"v_rcp_f32 {v(t[2])}, {v(t[2])}")
    a("s_nop 0")
    a(f"v_cvt_pk_bf16_f32 {v(t[2])}, {v(t[2])}, {v(t[2])}")
    a(f"v_lshlrev_b32 {v(g2)}, 16, {v(t[2])}")
    a(f"v_sub_f32 {v(t[2])}, 1.0, {v(g2)}")
    a(f"v_cvt_pk_bf16_f32 {v(t[2])}, {v(t[2])}, {v(t[2])}")
    a(f"v_lshlrev_b32 {v(g2+1)}, 16, {v(t[2])}")
    a(f"s_lshl_b32 {s(sT0)}, s16, 3")
    a(f"s_add_u32 {s(sT0)}, {s(sT0)}, {hx(G_OFF)}")
    a(f"v_lshlrev_b32 {v(t[0])}, 3, {v(vL)}")
    a("s_mov_b64 exec, 0xffffffff")
    a(f"buffer_store_dwordx2 {v(g2,2)}, {v(t[0])}, {srd(SRD_WS)}, {s(sT0)} offen sc1")
    a("s_mov_b64 exec, -1")
    a("s_barrier")
    store_flag(a, t[2], sF2)

    va.release(mark2)
    a.label("L_p3cons")
    a(f"s_lshl_b32 {s(sT0)}, {s(sRB)}, 13")
    a(f"s_add_u32 {s(sT0)}, {s(sT0)}, {hx(F2_OFF)}")
    a(f"v_lshl_add_u32 {v(t[6])}, {v(vL)}, 7, {s(sT0)}")
    a(f"v_lshrrev_b32 {v(t[0])}, 2, {v(vL)}")
    a(f"v_bfe_u32 {v(t[1])}, {v(vL)}, 1, 1")
    a(f"v_cmp_ne_u32 s[20:21], {s(sTH3)}, {v(t[1])}")
    a(f"v_subrev_u32 {v(t[0])}, 11, {v(t[0])}")
    a(f"v_cmp_gt_u32 s[22:23], 4, {v(t[0])}")
    a(f"s_lshr_b32 {s(sT0)}, {s(sDT)}, 1")
    a(f"v_cmp_ne_u32 s[24:25], {s(sT0)}, {v(t[0])}")
    a(f"s_and_b32 {s(sT0)}, {s(sDT)}, 1")
    a(f"v_and_b32 {v(t[1])}, 1, {v(vL)}")
    a(f"v_cmp_ne_u32 vcc, {s(sT0)}, {v(t[1])}")
    a(f"s_or_b64 s[24:25], s[24:25], vcc")
    a(f"s_and_b64 s[22:23], s[22:23], s[24:25]")
    a(f"s_or_b64 s[20:21], s[20:21], s[22:23]")
    a(f"s_not_b64 s[20:21], s[20:21]")
    av = va(16, 4)
    g2 = va(2)
    vA_, vG_, x, y_ = va(), va(), va(), va()
    a(f"v_lshrrev_b32 {v(vG_)}, 11, {v(vO)}")
    a(f"v_lshlrev_b32 {v(vG_)}, 3, {v(vG_)}")
    a(f"v_lshrrev_b32 {v(t[4])}, 3, {v(vL)}")
    a(f"v_and_b32 {v(t[5])}, 7, {v(vL)}")
    a(f"v_lshlrev_b32 {v(t[5])}, 4, {v(t[5])}")
    a(f"v_lshl_add_u32 {v(vA_)}, {v(t[4])}, 11, {v(t[5])}")
    for j in range(1, 4):
        a(f"s_add_u32 s{15+j}, s43, {j*16384}")
    a(f"s_mov_b32 s26, {hx(G_OFF)}")
    a(f"v_bfe_u32 {v(t[0])}, {v(vL)}, 2, 2")
    a(f"v_lshl_add_u32 {v(t[1])}, {v(vh)}, 3, {v(t[0])}")
    a(f"v_lshlrev_b32 {v(t[1])}, 7, {v(t[1])}")
    a(f"v_lshrrev_b32 {v(t[0])}, 1, {v(t[0])}")
    a(f"v_xor_b32 {v(t[0])}, {s(sLo)}, {v(t[0])}")
    a(f"v_lshl_add_u32 {v(t[1])}, {v(t[0])}, 6, {v(t[1])}")
    a(f"v_bfe_u32 {v(t[0])}, {v(vL)}, 4, 1")
    a(f"v_lshl_add_u32 {v(t[1])}, {v(t[0])}, 5, {v(t[1])}")
    a(f"v_and_b32 {v(t[0])}, 3, {v(vL)}")
    a(f"v_lshl_add_u32 {v(x)}, {v(t[0])}, 3, {v(t[1])}")
    pa = LdsAddr(a, va, x, 163839, 65536)
    a(f"s_lshl_b32 {s(sT1)}, {s(sHi)}, 12")
    a(f"v_lshl_add_u32 {v(y_)}, {v(vL)}, 4, {s(sT1)}")
    pb = LdsAddr(a, va, y_, 90111)
    fA = [[va(4, 4) for ss in range(4)] for b in range(2)]
    fB = [[va(4, 4) for ss in range(4)] for b in range(2)]
    acc = va(16, 4)
    stamp(a, "g")
    sk = a.newlabel("nopoll")
    a(f"s_cmp_lg_u32 {s(sW)}, 0")
    a(f"s_cbranch_scc1 {sk}")
    flag_poll(a, t[6], t[2], "s[20:21]")
    a.label(sk)
    stamp(a, "h")
    a("s_barrier")
    for j in range(4):
        a(f"buffer_load_dwordx4 {v(av+4*j,4)}, {v(vA_)}, {srd(SRD_O)}, {'s43' if j == 0 else f's{15+j}'} offen sc1")
    a(f"buffer_load_dwordx2 {v(g2,2)}, {v(vG_)}, {srd(SRD_WS)}, s26 offen sc1")

    def reads(k, h):
        wsl = 90112 + (k % 9) * 8192
        out = []
        for ss in range(4):
            out.append(f"ds_read_b64_tr_b16 {v(fA[k&1][ss],2)}, {pa.at(wsl+ss*2048)}")
            out.append(f"ds_read_b64_tr_b16 {v(fA[k&1][ss]+2,2)}, {pa.at(wsl+ss*2048+512)}")
            out.append(f"ds_read_b128 {v(fB[k&1][ss],4)}, {pb.at(k*8192+ss*1024)}")
        return out

    def mfmas(k, h):
        return [f"{MF} {v(acc,16)}, {v(fA[k&1][ss],4)}, {v(fB[k&1][ss],4)}, {'0' if (k,ss)==(0,0) else v(acc,16)}" for ss in range(4)]
    pre = ["s_waitcnt vmcnt(0)"]
    pre += [f"v_pk_mul_f32 {v(av+2*i,2)}, {v(av+2*i,2)}, {v(g2,2)} op_sel_hi:[1,0]" for i in range(8)]
    uloop(a, 11, 1, reads, mfmas, 4, hooks={'start': lambda: stamp(a, 6)}, fillers=spread(pre, [(k, 0) for k in range(5, 10)]), fpm=1, end_barrier=False)
    a("s_nop 7")
    a("s_nop 3")
    for j in range(4):
        for e in range(2):
            r = 4 * j + 2 * e
            a(f"v_pk_fma_f32 {v(av+r,2)}, {v(acc+r,2)}, {v(g2,2)}, {v(av+r,2)} op_sel:[0,1,0] op_sel_hi:[1,1,1]")
        a(f"buffer_store_dwordx4 {v(av+4*j,4)}, {v(vO)}, {srd(SRD_O)}, 0 offen offset:{j*32}{OPT['ost'].replace('_', ' ')}")
    endpgm(a, True)
    return va.hi


HEADER = open("cdna_kernels/" + NAME + ".s.ref").read().split("; Override launch geometry")[0]


def build(as_list=False):
    a = Asm()
    hi = gen(a)
    e1 = check_hazards(a.lines)
    e2 = check_waits(a.lines)
    print(f"vgprs {hi}, {len(a.lines)} lines, hazards {len(e1)}, waits {len(e2)}", file=sys.stderr)
    out = HEADER
    if as_list:
        out += f"; @launch kernel={KNAME} grid=(256,1,1) block=(512,1,1) lds=163840\n"
    else:
        out += "; @launch grid=(256,1,1) block=(512,1,1) lds=163840\n"
    out += '.amdgcn_target "amdgcn-amd-amdhsa--gfx950"\n.text\n'
    out += f".globl {KNAME}\n.p2align 8\n.type {KNAME},@function\n" + a.text()
    out += f""".section .rodata,"a"
.p2align 6
.amdhsa_kernel {KNAME}
  .amdhsa_next_free_vgpr 256
  .amdhsa_next_free_sgpr 102
  .amdhsa_accum_offset 256
  .amdhsa_group_segment_fixed_size 0
  .amdhsa_kernarg_size 144
  .amdhsa_user_sgpr_count 2
  .amdhsa_user_sgpr_kernarg_segment_ptr 1
  .amdhsa_system_sgpr_workgroup_id_x 1
.end_amdhsa_kernel
"""
    return out


if __name__ == "__main__":
    for o in sys.argv[2:]:
        if "=" in o:
            k, val = o.split("=", 1)
            OPT[k] = type(OPT[k])(val) if not isinstance(OPT[k], bool) else val == "1"
        elif o in OPT:
            OPT[o] = True
    dst = sys.argv[1] if len(sys.argv) > 1 else "cdna_kernels/" + NAME + ".s"
    txt = build(as_list="list" in sys.argv)
    if OPT["x"] == "noglc":
        txt = txt.replace(", 0 glc", ", 0")
    if OPT["x"] == "plainst":
        import re
        txt = re.sub(r"(buffer_store_dwordx4 .*offset:\d+) sc1", r"\1", txt)
    if OPT["x"] == "slowpoll":
        txt = txt.replace("s_sleep 6", "s_sleep 127")
    open(dst, "w").write(txt)
```
